```python
import torch

def _softmax(x, axis=-1):
    return torch.softmax(x, dim=axis)

def _gelu(x):
    return torch.nn.functional.gelu(x, approximate='tanh')

def _silu(x):
    return torch.nn.functional.silu(x)

def _sigmoid(x):
    return torch.sigmoid(x)

def _layernorm(x, axis=-1, eps=1e-05):
    m = x.mean(dim=axis, keepdim=True)
    v = x.var(dim=axis, keepdim=True, unbiased=False)
    return (x - m) / torch.sqrt(v + eps)

def _scatter_add(tgt, idx, src, axis=0):
    return tgt.clone().index_add_(axis, idx, src)

def _segment_sum(src, seg, n):
    out = torch.zeros((n,) + src.shape[1:], dtype=src.dtype)
    return out.index_add_(0, seg, src)

def _pad(x, pw):
    flat = tuple((v for pair in reversed(pw) for v in pair))
    return torch.nn.functional.pad(x, flat)
kernel_name = 'gated_mix__sliding_block__memory_aug_recurrent_mem_tr__prompt'

def setup_inputs():

    _w = lambda a: (lambda t: t.to(torch.bfloat16) if t.is_floating_point() else t)(torch.as_tensor(a))

    def _A_setup():
        B, S, D = (1, 2048, 448)
        return {'x': _w((lambda *s: torch.randn(*s, dtype=torch.bfloat16) * 0.05)(B, S, D)), 'wqkv': _w((lambda *s: torch.randn(*s, dtype=torch.bfloat16) * 1.6)(D, 3 * D)), 'wo': _w((lambda *s: torch.randn(*s, dtype=torch.bfloat16) * 0.05)(D, D))}
    _A_in = _A_setup()

    def _B_setup():
        B, S, Dm = (1, 2048, 448)
        H, Dh = (16, 256)
        M, seg = (8, 32)
        seg = min(seg, S)
        S = S // seg * seg
        return {'x': _w((lambda *s: torch.randn(*s, dtype=torch.bfloat16) * 0.05)(B, S, Dm)), 'mem0': _w((lambda *s: torch.randn(*s, dtype=torch.bfloat16) * 1.6)(B, M, Dm)), 'Wq': _w((lambda *s: torch.randn(*s, dtype=torch.bfloat16) * 0.8)(Dm, H, Dh) * Dm ** (-0.5)), 'Wk': _w((lambda *s: torch.randn(*s, dtype=torch.bfloat16) * 0.8)(Dm, H, Dh) * Dm ** (-0.5)), 'Wv': _w((lambda *s: torch.randn(*s, dtype=torch.bfloat16) * 1.6)(Dm, H, Dh) * Dm ** (-0.5)), 'Wo': _w((lambda *s: torch.randn(*s, dtype=torch.bfloat16) * 1.6)(H, Dh, Dm) * (H * Dh) ** (-0.5)), 'seg_len': seg}
    _B_in = _B_setup()
    return {'A_x': _A_in['x'], 'A_wqkv': _A_in['wqkv'], 'A_wo': _A_in['wo'], 'B_x': _B_in['x'], 'B_mem0': _B_in['mem0'], 'B_Wq': _B_in['Wq'], 'B_Wk': _B_in['Wk'], 'B_Wv': _B_in['Wv'], 'B_Wo': _B_in['Wo'], 'B_seg_len': _B_in['seg_len'], 'gate_w': _w((lambda *s: torch.randn(*s, dtype=torch.bfloat16) * 0.05)(448) * 16.0)}

def reference(A_x, A_wqkv, A_wo, B_x, B_mem0, B_Wq, B_Wk, B_Wv, B_Wo, B_seg_len, gate_w):

    def _A_ref(x, wqkv, wo):
        B, S, D = x.shape
        H = 16
        Dh = D // H
        W = 256
        qkv = (lambda x, *d: x.permute(*d))((x @ wqkv).reshape(B, S, 3, H, Dh), 2, 0, 3, 1, 4)
        q, k, v = (qkv[0], qkv[1], qkv[2])
        scores = torch.einsum('bhqd,bhkd->bhqk', q, k) * Dh ** (-0.5)
        idx = torch.arange(S)
        mask = (idx[:, None] - idx[None, :] >= 0) & (idx[:, None] - idx[None, :] < W)
        scores = torch.where(mask[None, None], scores, -1000000000.0)
        p = _softmax(scores, axis=-1)
        o = torch.einsum('bhqk,bhkd->bhqd', p, v)
        return (lambda x, *d: x.permute(*d))(o, 0, 2, 1, 3).reshape(B, S, D) @ wo

    def _B_ref(x, mem0, Wq, Wk, Wv, Wo, seg_len):
        B, S, Dm = x.shape
        H, Dh = (Wq.shape[1], Wq.shape[2])
        M = mem0.shape[1]
        scale = Dh ** (-0.5)
        n_seg = S // seg_len
        L = M + seg_len
        idx = torch.arange(L)
        mask = (idx[:, None] < M) | (idx[:, None] >= idx[None, :])
        mem = mem0
        outs = []
        for s in range(n_seg):
            xs = x[:, s * seg_len:(s + 1) * seg_len, :].clone()
            h = torch.concatenate([mem, xs], axis=1)
            q = torch.einsum('btd,dhe->bhte', h, Wq)
            k = torch.einsum('btd,dhe->bhte', h, Wk)
            v = torch.einsum('btd,dhe->bhte', h, Wv)
            scores = torch.einsum('bhqe,bhke->bhqk', q, k) * scale
            scores = torch.where(mask[None, None], scores, -1000000000.0)
            p = _softmax(scores, axis=-1)
            o = torch.einsum('bhqk,bhke->bhqe', p, v)
            o = torch.einsum('bhte,hed->btd', o, Wo)
            mem = o[:, :M, :].clone()
            outs.append(o[:, M:, :])
        return torch.concatenate(outs, axis=1)
    x = A_x
    g = _sigmoid((x * gate_w).sum(-1, keepdims=True))
    a = _A_ref(x, A_wqkv, A_wo)
    b = _B_ref(x, B_mem0, B_Wq, B_Wk, B_Wv, B_Wo, B_seg_len)
    return g * a + (1 - g) * b
```

```python
import re
TRANS = ('v_exp_', 'v_log_', 'v_rcp_', 'v_rsq_', 'v_sqrt_', 'v_sin_', 'v_cos_')
_rx = re.compile(r'^(-|\|)?([vas])(\d+)\|?$|^(-|\|)?([vas])\[(\d+):(\d+)\]\|?$')
def regs(tok):
    tok = tok.strip()
    if tok in ('vcc',): return {('s', 106), ('s', 107)}
    if tok == 'vcc_lo': return {('s', 106)}
    if tok == 'vcc_hi': return {('s', 107)}
    if tok == 'exec': return {('s', 126), ('s', 127)}
    if tok == 'm0': return {('s', 124)}
    m = _rx.match(tok)
    if not m: return set()
    if m.group(2): return {(m.group(2), int(m.group(3)))}
    return {(m.group(5), i) for i in range(int(m.group(6)), int(m.group(7)) + 1)}

class Asm:
    def __init__(s):
        s.lines = []; s.hist = []; s.pos = 0; s.nl = 0
    def raw(s, t): s.lines.append(t)
    def lab(s, base='L'):
        s.nl += 1; return '%s_%d' % (base, s.nl)
    def flush(s, n=None):
        need = 0
        for h in s.hist:
            d = s.pos - h['pos']
            req = 8 if h['cls'] == 'mfma' else (5 if h['sdst'] else 2)
            need = max(need, req - (d - 1))
        if need > 0: s._nop(need)
        s.hist = []
    def label(s, name):
        s.flush(); s.lines.append(name + ':')
    def _nop(s, n):
        while n > 0:
            k = min(n, 16); s.lines.append('  s_nop %d' % (k - 1)); s.pos += k; n -= k
    def __call__(s, text):
        for ln in text.strip().split('\n'):
            ln = ln.split(';')[0].strip()
            if ln: s.emit(ln)
    def emit(s, ln):
        if ln.endswith(':'): return s.label(ln[:-1])
        sp = ln.split(None, 1); mn = sp[0]; rest = sp[1] if len(sp) > 1 else ''
        if mn == 's_nop':
            s.lines.append('  ' + ln); s.pos += int(rest) + 1; return
        ops = [o.strip() for o in rest.split(',')]
        mods = ''
        if ops:
            t = ops[-1].split(None, 1)
            if len(t) > 1: ops[-1] = t[0]; mods = t[1]
        R = [regs(o) for o in ops]
        dst = set(); src = set(); srcC = set(); cls = 'salu'; sdst = False
        dpp = ('row_' in mods or 'quad_perm' in mods or 'wave_' in mods)
        if mn.startswith('v_mfma'):
            cls = 'mfma'; dst = R[0]; src = R[1] | R[2]; srcC = R[3]
        elif mn.startswith('v_smfmac'):
            cls = 'mfma'; dst = R[0]; src = R[1] | R[2] | R[3]; srcC = R[0]
        elif mn.startswith('v_'):
            cls = 'valu'
            if 'permlane' in mn and 'swap' in mn: dst = R[0] | R[1]; src = R[0] | R[1]
            elif '_co_' in mn: dst = R[0] | R[1]; src = set().union(*R[2:])
            else:
                dst = R[0]; src = set().union(*R[1:]) if len(R) > 1 else set()
                if mn.startswith(('v_fmac', 'v_mac', 'v_pk_fmac', 'v_writelane')) or dpp or 'op_sel' in mods or 'dst_sel' in mods: src |= R[0]
            if mn.startswith('v_cndmask') and len(ops) == 3: src |= regs('vcc')
            if mn.startswith('v_cmpx'): dst |= regs('exec')
            sdst = any(r[0] == 's' for r in dst)
        elif mn.startswith(('global_', 'buffer_', 'flat_', 'ds_')):
            cls = 'mem'
            ld = ('_load' in mn or '_read' in mn or ('atomic' in mn and 'sc0' in mods) or 'bpermute' in mn or 'swizzle' in mn) and ' lds' not in (' ' + mods) and '_lds_' not in mn
            if ld: dst = R[0]; src = set().union(*R[1:]) if len(R) > 1 else set()
            else: src = set().union(*R)
            if ld and 'd16' in mn: src |= R[0]
        else:
            if mn.startswith(('s_cbranch', 's_branch', 's_endpgm', 's_setpc', 's_swappc')):
                s.flush(); s.lines.append('  ' + ln); s.pos += 1; return
            if R: dst = R[0]; src = set().union(*R[1:]) if len(R) > 1 else set()
        need = 0
        for h in s.hist:
            gap = s.pos - h['pos'] - 1
            req = 0
            if h['cls'] == 'mfma':
                if cls == 'mfma':
                    if h['dst'] & src: req = 8
                    elif h['dst'] & srcC and not (h['dst'] == srcC): req = 6
                    elif h['dst'] & dst and not (h['dst'] == srcC): req = 8
                elif cls in ('valu', 'mem'):
                    if h['dst'] & (src | dst): req = 8
                    elif h['srcC'] & dst: req = 3
            elif h['cls'] == 'valu':
                vd = h['dst']
                if cls == 'mfma' and vd & (src | srcC): req = 2
                if cls == 'mfma' and vd & regs('exec'): req = 4
                if cls == 'valu':
                    if dpp and vd & src: req = max(req, 2)
                    if dpp and vd & regs('exec'): req = max(req, 5)
                    if 'permlane' in mn and vd & src: req = max(req, 2)
                    if ('permlane' in mn or 'lane' in mn) and vd & regs('exec'): req = max(req, 4)
                    if mn.startswith(('v_readfirstlane', 'v_readlane')) and vd & src: req = max(req, 1)
                    if h['trans'] and vd & src: req = max(req, 1)
                    if h['opsel'] and vd & (src | dst): req = max(req, 1)
                    if h['sdst'] and {r for r in vd if r[0] == 's'} & src: req = max(req, 4 if 'lane' in mn else 2)
                if cls == 'mem' and h['sdst'] and {r for r in vd if r[0] == 's'} & src: req = max(req, 5)
            elif h['cls'] == 'mem':
                if h['wide'] and h['src'] & dst and cls in ('valu', 'mem', 'mfma'): req = 2
            elif h['cls'] == 'salu':
                if h['dst'] & regs('m0') and cls == 'mem': req = 1
            need = max(need, req - gap)
        if need > 0: s._nop(need)
        s.lines.append('  ' + ln)
        s.hist.append(dict(cls=cls, dst=dst, src=src, srcC=srcC, pos=s.pos, sdst=sdst, trans=mn.startswith(TRANS),
                           opsel=('op_sel' in mods or 'dst_sel' in mods),
                           wide=(cls == 'mem' and not dst and ('x4' in mn or 'x3' in mn or 'cmpswap' in mn))))
        s.pos += 1
        s.hist = [h for h in s.hist if s.pos - h['pos'] <= 10]
    def text(s): return '\n'.join(s.lines) + '\n'

def kernel_begin(a, name):
    a.raw('.globl %s\n.p2align 8\n.type %s,@function' % (name, name)); a.hist = []; a.raw(name + ':')
def kdesc(name, vgpr=512, sgpr=102, accum=256):
    return '''.p2align 6
.amdhsa_kernel %s
  .amdhsa_next_free_vgpr %d
  .amdhsa_next_free_sgpr %d
  .amdhsa_accum_offset %d
  .amdhsa_group_segment_fixed_size 0
  .amdhsa_kernarg_size 112
  .amdhsa_user_sgpr_count 2
  .amdhsa_user_sgpr_kernarg_segment_ptr 1
  .amdhsa_system_sgpr_workgroup_id_x 1
.end_amdhsa_kernel
''' % (name, vgpr, sgpr, accum)
```

```python
from asmlib import *
from layout import off
from prep import f2u
GRID = 128; LDS = 16384; NV = 512
NEG = f2u(-1e30)
SYNC = [False]
def colreduce(a, op, r, t):
    a(f'''v_mov_b32 v{t}, v{r}
    v_permlane16_swap_b32 v{r}, v{t}
    {op} v{r}, v{r}, v{t}
    v_mov_b32 v{t}, v{r}
    v_permlane32_swap_b32 v{r}, v{t}
    {op} v{r}, v{r}, v{t}''')
def atta_task(a, END):
    BIAS, SC, PK, OAC, QF = 16, 88, 160, 196, 204
    a(f'''
    v_lshlrev_b32 v3, 4, v2
    v_and_b32 v4, 15, v2
    v_lshrrev_b32 v5, 4, v2
    s_lshr_b32 s12, s40, 1             ; qb
    s_lshl_b32 s13, s10, 19            ; 4w * 131072
    s_add_u32 s14, s13, {off['K']}
    v_add_u32 v6, s14, v3
    s_lshl_b32 s14, s40, 10
    s_add_u32 s14, s14, s13
    s_add_u32 s14, s14, {off['Q']}
    v_add_u32 v7, s14, v3              ; Q addr
    s_add_u32 s14, s13, {off['VT']}
    v_add_u32 v8, s14, v3              ; V addr
    ''')
    for m in range(9): a(f's_add_i32 s14, s12, {m-8}\ns_max_i32 s14, s14, 0\ns_lshl_b32 s{60+m}, s14, 10\ns_lshl_b32 s{70+m}, s14, 11')
    if SYNC[0]:
        P, Dn = a.lab('AW'), a.lab('AWD')
        a(f'''
        s_lshr_b32 s14, s60, 11            ; gmin
        s_lshr_b32 s15, s12, 1             ; gmax
        v_lshrrev_b32 v9, 3, v2
        v_add_u32 v9, s14, v9
        v_min_u32 v9, s15, v9
        v_and_b32 v10, 7, v2
        v_min_u32 v10, 5, v10
        v_lshlrev_b32 v9, 8, v9
        v_lshl_add_u32 v9, v10, 2, v9
        v_add_u32 v9, {off['FL'] + 224}, v9
        s_mov_b32 s14, 4096
        {P}:
        global_load_dword v10, v9, s[8:9] sc0 sc1
        s_waitcnt vmcnt(0)
        v_cmp_gt_u32 vcc, 4, v10
        s_cbranch_vccz {Dn}
        s_sleep 16
        s_sub_u32 s14, s14, 1
        s_cbranch_scc0 {P}
        {Dn}:
        ''')
    def kq_loads(hh):
        kb = 72*(hh & 1)
        for t in range(18):
            if t % 2 == 0: a(f'v_add_u32 v9, s{70+t//2}, v6')
            a(f'global_load_dwordx4 a[{kb+4*t}:{kb+4*t+3}], v9, s[8:9] offset:{(t&1)*1024}')
        q = QF + 4*(hh & 1)
        a(f'global_load_dwordx4 v[{q}:{q+3}], v7, s[8:9]\nv_add_u32 v6, 131072, v6\nv_add_u32 v7, 131072, v7')
    def v_loads():
        for dt in range(2):
            for m in range(9):
                r = 144 + 8*m + 4*dt
                a(f'v_add_u32 v9, s{60+m}, v8\nglobal_load_dwordx4 a[{r}:{r+3}], v9, s[8:9]')
            a('v_add_u32 v8, 65536, v8')
    kq_loads(0)
    a(f'''
    s_lshl_b32 s14, s40, 4
    v_add_u32 v10, s14, v4             ; i
    s_lshl_b32 s14, s12, 5
    s_sub_u32 s14, s14, 256
    v_lshlrev_b32 v11, 2, v5
    v_add_u32 v11, s14, v11            ; j0 (signed)
    v_sub_u32 v12, v10, v11            ; i - j0
    v_min_u32 v13, 255, v10
    v_mov_b32 v14, 0x{NEG:08x}
    ''')
    for t in range(18):
        for r in range(4):
            a(f'v_subrev_u32 v15, {16*t+r}, v12\nv_cmp_le_u32 vcc, v15, v13\nv_cndmask_b32 v{BIAS+4*t+r}, v14, 0, vcc')
    for hh in range(4):
        v_loads()
        if hh < 3: kq_loads(hh + 1)
        after = 18 + (19 if hh < 3 else 0)
        a(f's_waitcnt vmcnt({after})')
        kb = 72*(hh & 1); q = QF + 4*(hh & 1)
        for t in range(18):
            a(f'v_mfma_f32_16x16x32_bf16 v[{SC+4*t}:{SC+4*t+3}], a[{kb+4*t}:{kb+4*t+3}], v[{q}:{q+3}], v[{BIAS+4*t}:{BIAS+4*t+3}]')
        a(f'v_max3_f32 v212, v{SC}, v{SC+1}, v{SC+2}\nv_max3_f32 v213, v{SC+3}, v{SC+4}, v{SC+5}')
        for r in range(6, 70, 4): a(f'v_max3_f32 v212, v212, v{SC+r}, v{SC+r+1}\nv_max3_f32 v213, v213, v{SC+r+2}, v{SC+r+3}')
        a(f'v_max3_f32 v212, v212, v{SC+70}, v{SC+71}\nv_max_f32 v212, v212, v213')
        colreduce(a, 'v_max_f32', 212, 213)
        a('v_mov_b32 v213, v212')
        for r in range(0, 72, 2): a(f'v_pk_add_f32 v[{SC+r}:{SC+r+1}], v[{SC+r}:{SC+r+1}], v[212:213] neg_lo:[0,1] neg_hi:[0,1]')
        for r in range(72): a(f'v_exp_f32 v{SC+r}, v{SC+r}')
        a(f'v_pk_add_f32 v[214:215], v[{SC}:{SC+1}], v[{SC+2}:{SC+3}]\nv_pk_add_f32 v[216:217], v[{SC+4}:{SC+5}], v[{SC+6}:{SC+7}]')
        for r in range(8, 72, 4): a(f'v_pk_add_f32 v[214:215], v[214:215], v[{SC+r}:{SC+r+1}]\nv_pk_add_f32 v[216:217], v[216:217], v[{SC+r+2}:{SC+r+3}]')
        for r in range(36): a(f'v_cvt_pk_bf16_f32 v{PK+r}, v{SC+2*r}, v{SC+2*r+1}')
        a('v_pk_add_f32 v[214:215], v[214:215], v[216:217]\nv_add_f32 v214, v214, v215')
        a(f's_waitcnt vmcnt({19 if hh < 3 else 0})')
        for m in range(9):
            for dt in range(2):
                r = 144 + 8*m + 4*dt; o = OAC + 4*dt
                c = '0' if m == 0 else f'v[{o}:{o+3}]'
                a(f'v_mfma_f32_16x16x32_bf16 v[{o}:{o+3}], a[{r}:{r+3}], v[{PK+4*m}:{PK+4*m+3}], {c}')
        colreduce(a, 'v_add_f32', 214, 215)
        a('v_rcp_f32 v214, v214\nv_mov_b32 v215, v214')
        for r in range(0, 8, 2): a(f'v_pk_mul_f32 v[{OAC+r}:{OAC+r+1}], v[{OAC+r}:{OAC+r+1}], v[214:215]')
        for r in range(4): a(f'v_cvt_pk_bf16_f32 v{216+r}, v{OAC+2*r}, v{OAC+2*r+1}')
        if hh == 0: a('s_lshl_b32 s14, s10, 12\nv_add_u32 v10, s14, v3')
        a(f'ds_write_b128 v10, v[216:219] offset:{1024*hh}')
    a(f'''
    s_mul_i32 s14, s10, {7*16384}
    s_add_u32 s14, s14, {off['WOA']}
    v_add_u32 v9, s14, v3
    s_mul_i32 s14, s40, 28672
    s_mul_i32 s15, s10, 7168
    s_add_u32 s14, s14, s15
    s_add_u32 s14, s14, {off['OA']}
    v_add_u32 v11, s14, v3
    ''')
    def w_loads(t):
        b = 64*(t % 3)
        for h in range(16):
            a(f'global_load_dwordx4 a[{b+4*h}:{b+4*h+3}], v9, s[8:9] offset:{(h&3)*1024}')
            if h % 4 == 3: a('v_add_u32 v9, 4096, v9')
    w_loads(0); w_loads(1)
    a('s_waitcnt lgkmcnt(0)\ns_barrier')
    for h in range(16): a(f'ds_read_b128 v[{16+4*h}:{19+4*h}], v3 offset:{1024*h}')
    for t in range(7):
        if t + 2 < 7: w_loads(t + 2)
        y = (16 if t + 1 < 7 else 0) + (16 if t + 2 < 7 else 0) + (1 if t >= 1 else 0) + (1 if t >= 2 and t + 1 >= 7 else 0)
        a(f's_waitcnt vmcnt({min(y, 33)}) lgkmcnt(0)')
        b = 64*(t % 3); o = 88 + 8*(t & 1)
        for h in range(16):
            oo = o + 4*(h & 1)
            c = '0' if h < 2 else f'v[{oo}:{oo+3}]'
            a(f'v_mfma_f32_16x16x32_bf16 v[{oo}:{oo+3}], a[{b+4*h}:{b+4*h+3}], v[{16+4*h}:{19+4*h}], {c}')
        a(f'v_pk_add_f32 v[{o}:{o+1}], v[{o}:{o+1}], v[{o+4}:{o+5}]\nv_pk_add_f32 v[{o+2}:{o+3}], v[{o+2}:{o+3}], v[{o+6}:{o+7}]')
        a(f'global_store_dwordx4 v11, v[{o}:{o+3}], s[8:9]{" sc0 sc1" if SYNC[0] else ""}\nv_add_u32 v11, 1024, v11')
    a('s_waitcnt vmcnt(0)')
    if SYNC[0]:
        a(f'''
        s_lshl_b32 s14, s40, 4
        s_lshl_b32 s15, s10, 2
        s_add_u32 s14, s14, s15
        s_add_u32 s14, s14, {off['FL'] + 8192}
        v_mov_b32 v9, s14
        v_mov_b32 v10, 4
        global_store_dword v9, v10, s[8:9] sc0 sc1
        ''')
    a(f's_barrier\ns_branch {END}')
def gen(a, name):
    kernel_begin(a, name)
    END = a.lab('K3END')
    a(f'''
    s_load_dwordx2 s[8:9], s[0:1], 104
    v_lshrrev_b32 v1, 6, v0
    v_and_b32 v2, 63, v0
    v_readfirstlane_b32 s10, v1
    s_cmp_ge_u32 s2, {GRID}
    s_cbranch_scc1 {END}
    s_mov_b32 s40, s2
    s_waitcnt lgkmcnt(0)
    ''')
    atta_task(a, END)
    a(f'{END}:\ns_endpgm')
```

```python
from asmlib import *
from layout import off
NROLE = 32
LDS_CHAIN = 86016 + 64
SPIN = 1 << 20
def wreg(widx):
    if widx < 32: return 'a[%d:%d]' % (8*widx, 8*widx + 7), 'a', 8*widx
    b = 120 + 8*(widx - 32); return 'v[%d:%d]' % (b, b + 7), 'v', b
def sadd(a, pair, k):
    a('s_add_u32 s%d, s%d, %d\ns_addc_u32 s%d, s%d, 0' % (pair, pair, k, pair + 1, pair + 1))
def sbase(a, pair, src, k):
    a('s_add_u32 s%d, s%d, %d\ns_addc_u32 s%d, s%d, 0' % (pair, src, k, pair + 1, src + 1))

PROF = [False]
WT = [0]
import os
XPOS = eval(os.environ.get('XPOS', '[]'))
UPOS = eval(os.environ.get('UPOS', '[7,8,9,10,11,12,13,14]'))
SYNC = [False]
PSTEP = 20
def stamp(a, k):
    if not PROF[0]: return
    a(f'''
    s_memrealtime s[50:51]
    s_waitcnt lgkmcnt(0)
    s_cmp_eq_u32 s30, {PSTEP + (k == 6)}
    s_cselect_b32 s{60+k}, s50, s{60+k}
    ''')
def stamp_init(a):
    if not PROF[0]: return
    for k in range(8): a(f's_mov_b32 s{60+k}, 0')
def stamp_dump(a, rbase, pos):
    if not PROF[0]: return
    for k in range(8): a(f'v_mov_b32 v{4+k}, s{60+k}')
    a(f'''s_add_u32 s50, s14, {rbase}
    s_lshl_b32 s50, s50, 2
    s_add_u32 s50, s50, s10
    s_lshl_b32 s50, s50, 5
    s_add_u32 s50, s50, {off['G']}
    v_mov_b32 v3, s50
    global_store_dwordx4 v3, v[4:7], s[8:9]
    global_store_dwordx4 v3, v[8:11], s[8:9] offset:16''')

def elect(a, EXIT):
    L = a.lab
    DONE, PUB, POLL, PL, GOT = L('EDONE'), L('EPUB'), L('EPOLL'), L('EPL'), L('EGOT')
    a(f'''
    s_cmp_lg_u32 s10, 0
    s_cbranch_scc1 {DONE}
    s_mov_b64 exec, 1
    s_getreg_b32 s11, hwreg(HW_REG_XCC_ID, 0, 4)
    s_lshl_b32 s12, s11, 2
    v_mov_b32 v3, s12
    v_mov_b32 v4, 1
    global_atomic_add v5, v3, v4, s[6:7] sc0 sc1
    s_waitcnt vmcnt(0)
    v_readfirstlane_b32 s13, v5
    s_add_u32 s11, s11, 1
    s_mov_b32 s14, -1
    v_mov_b32 v3, 64
    s_cmp_ge_u32 s13, {NROLE}
    s_cbranch_scc1 {PUB}
    s_cmp_lg_u32 s13, {NROLE-1}
    s_cbranch_scc1 {POLL}
    v_mov_b32 v4, s11
    v_mov_b32 v5, 0
    global_atomic_cmpswap v6, v3, v[4:5], s[6:7] sc0 sc1
    s_waitcnt vmcnt(0)
    {POLL}:
    s_mov_b32 s15, 512
    {PL}:
    global_load_dword v6, v3, s[6:7] sc0 sc1
    s_waitcnt vmcnt(0)
    v_readfirstlane_b32 s16, v6
    s_cmp_lg_u32 s16, 0
    s_cbranch_scc1 {GOT}
    s_sub_u32 s15, s15, 1
    s_cbranch_scc0 {PL}
    v_mov_b32 v4, 84
    v_mov_b32 v5, 1
    global_atomic_add v4, v5, s[6:7] sc1
    v_mov_b32 v4, 99
    v_mov_b32 v5, 0
    global_atomic_cmpswap v6, v3, v[4:5], s[6:7] sc0 sc1
    s_waitcnt vmcnt(0)
    v_readfirstlane_b32 s16, v6
    s_cmp_lg_u32 s16, 0
    s_cbranch_scc1 {GOT}
    s_mov_b32 s16, 99
    {GOT}:
    s_cmp_eq_u32 s16, s11
    s_cselect_b32 s14, s13, -1
    s_cmp_lg_u32 s16, 99
    s_cbranch_scc1 {PUB}
    v_mov_b32 v3, 68
    v_mov_b32 v4, 1
    global_atomic_add v5, v3, v4, s[6:7] sc0 sc1
    s_waitcnt vmcnt(0)
    v_readfirstlane_b32 s13, v5
    s_or_b32 s14, s13, 0x100
    s_cmp_ge_u32 s13, {NROLE}
    s_cselect_b32 s14, -1, s14
    {PUB}:
    v_mov_b32 v3, {LDS_CHAIN-16}
    v_mov_b32 v4, s14
    ds_write_b32 v3, v4
    s_waitcnt lgkmcnt(0)
    s_mov_b64 exec, -1
    {DONE}:
    s_barrier
    v_mov_b32 v3, {LDS_CHAIN-16}
    ds_read_b32 v4, v3
    s_waitcnt lgkmcnt(0)
    v_readfirstlane_b32 s14, v4
    s_cmp_eq_u32 s14, -1
    s_cbranch_scc1 {EXIT}
    s_lshr_b32 s17, s14, 8
    s_and_b32 s14, s14, 0xff
    ''')

def load_weights(a, nfrag, voff, sb):
    n = 0
    for w in range(nfrag):
        _, t, b = wreg(w)
        for hf in range(2):
            a('global_load_dwordx4 %s[%d:%d], %s, s[%d:%d] offset:%d' % (t, b + 4*hf, b + 4*hf + 3, voff, sb, sb + 1, (n & 3)*1024))
            n += 1
            if n % 4 == 0: sadd(a, sb, 4096)
            if n % 16 == 0: a('s_waitcnt vmcnt(32)')
    if n % 4: sadd(a, sb, (n % 4)*1024)

def poll_mem(a, EXIT, vA, vB, pa=76, sc='sc1', hook=None):
    P, Dn, CK = a.lab('PM'), a.lab('PMD'), a.lab('PMC')
    ld = f'''
    global_load_dwordx4 v[{pa}:{pa+3}], {vA}, s[22:23] {sc}
    global_load_dwordx4 v[{pa+4}:{pa+7}], {vB}, s[22:23] {sc}
    s_waitcnt vmcnt(0)
    '''
    if hook:
        a(f'''
        v_max3_u32 v3, v{pa}, v{pa+1}, v{pa+2}
        v_max3_u32 v4, v{pa+3}, v{pa+4}, v{pa+5}
        v_max3_u32 v3, v3, v{pa+6}, v{pa+7}
        v_max_u32 v3, v3, v4
        v_cmp_eq_u32 vcc, -1, v3
        s_cbranch_vccz {Dn}
        ''')
        a(ld); hook(); a(f's_branch {CK}')
    a(f'{P}:')
    if hook: a('s_sleep 4')
    a(ld)
    if hook: a(f'{CK}:')
    a(f'''
    v_max3_u32 v3, v{pa}, v{pa+1}, v{pa+2}
    v_max3_u32 v4, v{pa+3}, v{pa+4}, v{pa+5}
    v_max3_u32 v3, v3, v{pa+6}, v{pa+7}
    v_max_u32 v3, v3, v4
    v_cmp_eq_u32 vcc, -1, v3
    s_cbranch_vccz {Dn}
    s_sub_u32 s18, s18, 1
    s_cbranch_scc0 {P}
    s_branch {EXIT}
    {Dn}:
    ''')
    stamp(a, 5)
    a(f'''
    ds_write_b128 {vA}, v[{pa}:{pa+3}]
    ds_write_b128 {vB}, v[{pa+4}:{pa+7}]
    s_waitcnt lgkmcnt(0)
    s_barrier
    ''')

def pubstore(a, ins):
    S, E = a.lab('PS'), a.lab('PE')
    a(f'''
    s_cmp_lg_u32 s17, 0
    s_cbranch_scc1 {S}
    ''')
    for i in ins: a(i)
    a(f's_branch {E}\n{S}:')
    for i in ins: a(i + (' sc0 sc1' if i.startswith('global_') else ''))
    a(f'{E}:')

def role_A(a, EXIT, prof=False, sleepA=0):
    TT, PS, FLG = 12288, 28672, 11264
    MO, XK, MK, ACC, TF = 4, 32, 60, 68, 96
    SA = ACC
    vMA, vMB, vRD, vMK, vMK2, vXK, vXK2, vTW, vTR, vTR2, vPSW, vPSX, vPSM, vPX, vPM, vIDX = ['v%d' % i for i in range(104, 120)]
    a(f'''
    s_mul_i32 s19, s14, 401408
    s_mul_i32 s20, s10, 100352
    s_add_u32 s19, s19, s20
    v_lshlrev_b32 v96, 4, v2
    v_add_u32 v3, s19, v96
    ''')
    n = 0
    for c in range(7):
        a(f'''s_add_u32 s19, s10, {(4*c) % 7}
        s_cmp_ge_u32 s19, 7
        s_cselect_b32 s31, 7, 0
        s_sub_u32 s19, s19, s31
        s_lshl_b32 s19, s19, 11
        v_add_u32 v97, s19, v3''')
        sbase(a, 20, 8, off['WA'])
        for t in range(7):
            _, ty, b = wreg(7*t + c)
            for hf in range(2):
                a('global_load_dwordx4 %s[%d:%d], v97, s[20:21] offset:%d' % (ty, b + 4*hf, b + 4*hf + 3, hf*1024))
            if t < 6: sadd(a, 20, 14336)
        a('s_waitcnt vmcnt(28)')
    a(f'''
    v_lshrrev_b32 v0, 4, v2        ; g
    v_and_b32 v1, 15, v2           ; j
    v_and_b32 v74, 7, v2           ; j&7
    s_lshl_b32 s19, s10, 10
    v_add_u32 {vMA}, s19, v96
    v_mov_b32 {vRD}, {vMA}
    s_add_u32 s19, s10, 4
    s_cmp_eq_u32 s19, 7
    s_cselect_b32 s19, 0, s19
    s_lshl_b32 s19, s19, 10
    v_add_u32 {vMB}, s19, v96      ; chunk (w+4)%7 global offset
    s_mul_i32 s19, s10, 1792       ; 14w*128
    v_lshlrev_b32 v98, 4, v74
    v_add_u32 v98, s19, v98        ; 14w*128 + i*16
    v_lshl_add_u32 {vMK}, v0, 7, v98
    v_lshrrev_b32 v97, 1, v0
    v_lshl_add_u32 {vMK2}, v97, 7, v98
    v_and_b32 v97, 1, v0
    v_lshl_add_u32 {vMK2}, v97, 3, {vMK2}
    v_add_u32 {vMK2}, 1536, {vMK2}
    s_mul_i32 s19, s10, 7168
    v_add_u32 {vXK}, s19, v96
    v_add_u32 {vXK2}, 4096, {vXK}
    s_add_u32 s26, s19, 40960
    s_mul_i32 s19, s10, 3584
    s_add_u32 s19, s19, {TT}
    v_lshlrev_b32 v98, 5, v1
    v_lshl_add_u32 v98, v0, 3, v98
    v_add_u32 {vTW}, s19, v98
    v_lshlrev_b32 v98, 3, v1
    v_lshl_add_u32 v98, v0, 8, v98
    v_add_u32 {vTR}, s19, v98
    v_lshlrev_b32 v98, 3, v2
    v_add_u32 v98, 3072, v98
    v_add_u32 {vTR2}, s19, v98
    s_mul_i32 s19, s10, 3072
    s_add_u32 s19, s19, {PS}
    v_add_u32 {vPSW}, s19, v96
    v_and_b32 v74, 1, v2
    v_lshl_add_u32 v74, v0, 1, v74 ; i
    v_bfe_u32 v75, v2, 1, 3        ; q
    v_lshrrev_b32 v96, 2, v75      ; q>>2
    v_and_b32 v97, 3, v75          ; q&3
    v_lshlrev_b32 v98, 4, v74      ; i*16
    v_lshl_add_u32 v99, v96, 10, v98
    v_lshl_add_u32 v99, v97, 8, v99
    v_add_u32 {vPSX}, {PS+1024}, v99
    v_lshl_add_u32 v99, v96, 8, v98
    v_lshl_add_u32 v99, v97, 2, v99
    v_add_u32 {vPSM}, {PS}, v99
    s_lshr_b32 s19, s14, 1
    s_lshl_b32 s19, s19, 10
    s_and_b32 s20, s14, 1
    s_lshl_b32 s31, s20, 7
    s_add_u32 s19, s19, s31
    v_lshl_add_u32 v99, v97, 8, v98
    v_lshl_add_u32 v99, v96, 3, v99
    v_add_u32 {vPX}, s19, v99
    s_lshr_b32 s19, s14, 2
    s_lshl_b32 s19, s19, 9
    s_bfe_u32 s31, s14, 0x10001
    s_lshl_b32 s31, s31, 7
    s_add_u32 s19, s19, s31
    s_lshl_b32 s20, s20, 3
    s_add_u32 s19, s19, s20
    s_add_u32 s19, s19, 8192
    v_lshl_add_u32 v99, v96, 8, v98
    v_and_b32 v97, 2, v75
    v_lshl_add_u32 v99, v97, 1, v99
    v_add_u32 {vPM}, s19, v99
    v_and_b32 v96, 8, v2
    v_mov_b32 {vIDX}, 0x4444
    v_mov_b32 v97, 0xeeee
    v_cmp_ne_u32 vcc, 0, v96
    v_cndmask_b32 {vIDX}, {vIDX}, v97, vcc
    s_lshl_b32 s31, s10, 2
    s_add_u32 s31, s31, {FLG}
    v_mov_b32 v0, s31
    v_mov_b32 v1, 0
    ds_write_b32 v0, v1
    s_mov_b32 s32, 0x33333333
    s_mov_b32 s33, 0x33333333
    ''')
    sbase(a, 22, 8, off['MEM']); sbase(a, 24, 8, off['XK']); sbase(a, 28, 8, off['PB'])
    def xk_loads():
        for f in range(7): a(f'global_load_dwordx4 v[{XK+4*f}:{XK+4*f+3}], {vXK2}, s[24:25] offset:{1024*f-4096}')
        sadd(a, 24, 28672)
    xk_loads()
    a(f's_mov_b32 s18, {SPIN}\ns_mov_b32 s30, 0\ns_waitcnt vmcnt(0) lgkmcnt(0)\ns_barrier')
    if prof: a('s_memtime s[34:35]')
    stamp_init(a)
    LOOP, NOFIN, P, Dn, RT, OK = [a.lab(x) for x in ('ALOOP', 'ANOFIN', 'APM', 'APMD', 'ART', 'AOK')]
    a(f'{LOOP}:')
    for r in range(0, 28, 2): a(f'v_mov_b64 v[{ACC+r}:{ACC+r+1}], 0')
    a(f'''
    s_add_u32 s19, s30, 1
    v_mov_b32 v2, s31
    v_mov_b32 v3, s19
    {P}:
    global_load_dwordx4 v[{MO}:{MO+3}], {vMA}, s[22:23] sc1
    global_load_dwordx4 v[{MO+4}:{MO+7}], {vMB}, s[22:23] sc1
    s_waitcnt vmcnt(0)
    v_max3_u32 v0, v{MO}, v{MO+1}, v{MO+2}
    v_max3_u32 v1, v{MO+3}, v{MO+4}, v{MO+5}
    v_max3_u32 v0, v0, v{MO+6}, v{MO+7}
    v_max_u32 v0, v0, v1
    v_cmp_eq_u32 vcc, -1, v0
    s_cbranch_vccz {Dn}
    s_sub_u32 s18, s18, 1
    s_cbranch_scc0 {P}
    s_branch {EXIT}
    {Dn}:
    ds_write_b128 {vMA}, v[{MO}:{MO+3}]
    ds_write_b128 {vMA}, v[{MO+4}:{MO+7}] offset:4096
    ds_write_b128 {vMA}, v[{MO}:{MO+3}] offset:7168
    ds_write_b32 v2, v3
    v_mov_b32 v2, {FLG}
    ''')
    stamp(a, 5)
    if PROF[0]: a(f's_cmp_eq_u32 s30, {PSTEP+1}\ns_cselect_b32 s66, s50, s66')
    def sm(t, c):
        ac = ACC + 4*t
        a(f'v_smfmac_f32_16x16x64_bf16 v[{ac}:{ac+3}], v[{MO+4*c}:{MO+4*c+3}], {wreg(7*t+c)[0]}, {vIDX}')
    def rd_others():
        a(f'ds_read_b128 v[{TF}:{TF+3}], v2')
        for c in range(2, 7): a(f'ds_read_b128 v[{MO+4*c}:{MO+4*c+3}], {vRD} offset:{((4*c) % 7)*1024}')
    def chk(tgt, cond):
        a(f'''s_waitcnt lgkmcnt(5)
        v_min3_u32 v0, v{TF}, v{TF+1}, v{TF+2}
        v_min_u32 v0, v0, v{TF+3}
        v_cmp_ne_u32 vcc, v0, v3
        {cond} {tgt}''')
    for t in range(7):
        sm(t, 0); sm(t, 1)
        if t == 2: rd_others()
    chk(OK, 's_cbranch_vccz')
    a(f'{RT}:')
    a(f's_sub_u32 s18, s18, 1\ns_cbranch_scc1 {EXIT}\ns_waitcnt lgkmcnt(0)')
    rd_others()
    chk(RT, 's_cbranch_vccnz')
    a(f'{OK}:')
    stamp(a, 0)
    def mk_read(q):
        k = MK + 4*(q & 1)
        return f'ds_read_b128 v[{k}:{k+3}], {vMK} offset:{512*q}' if q < 3 else f'ds_read_b64 v[{k}:{k+1}], {vMK2}'
    def post(t):
        ac = ACC + 4*t; tm = 2*(t & 1); L = []
        L.append(f'v_cvt_pk_bf16_f32 v{tm}, v{ac}, v{ac+1}\nv_cvt_pk_bf16_f32 v{tm+1}, v{ac+2}, v{ac+3}')
        w = f'ds_write_b64 {vTW}, v[{tm}:{tm+1}] offset:{512*t}'
        if t & 1:
            q = t >> 1; tf = TF + 4*(q & 1)
            w += f'\nds_read_b64_tr_b16 v[{tf}:{tf+1}], {vTR} offset:{1024*q}\nds_read_b64_tr_b16 v[{tf+2}:{tf+3}], {vTR} offset:{1024*q+128}'
        if t == 6: w += f'\nds_read_b64_tr_b16 v[{TF+4}:{TF+5}], {vTR2}'
        L.append(w)
        return L
    def smm(q):
        tf = TF + 4*(q & 1)
        for jt in range(3):
            k = (MK + 4*(q & 1)) if jt == 0 else (XK + 12*(jt - 1) + 4*q if q < 3 else XK + 24 + 2*(jt - 1))
            sa = SA + 4*jt
            c = '0' if q == 0 else f'v[{sa}:{sa+3}]'
            if q < 3: a(f'v_mfma_f32_16x16x32_bf16 v[{sa}:{sa+3}], v[{k}:{k+3}], v[{tf}:{tf+3}], {c}')
            else: a(f'v_mfma_f32_16x16x16_bf16 v[{sa}:{sa+3}], v[{k}:{k+1}], v[{tf}:{tf+1}], {c}')
    pend = []
    for m in range(35):
        t, c = divmod(m, 5); c += 2
        if t == 0: a(f's_waitcnt lgkmcnt({6-c})')
        sm(t, c)
        if m == 5: a(mk_read(0)); a(mk_read(1))
        if m in XPOS:
            f = XPOS.index(m)
            if f == 0: a('s_mov_b32 m0, s26')
            if f == 4: a('s_add_u32 m0, s26, 4096')
            a(f'global_load_lds_dwordx4 {vXK if f < 4 else vXK2}, s[24:25] offset:{1024*(f&3)}')
        if c == 3 and t >= 1: pend = post(t - 1)
        if pend: a(pend.pop(0))
        if m == 19: a('s_waitcnt lgkmcnt(1)'); smm(0); a(mk_read(2))
        if m == 29: a('s_waitcnt lgkmcnt(1)'); smm(1); a(mk_read(3))
    for p in post(6): a(p)
    a('s_waitcnt lgkmcnt(2)'); smm(2)
    a('s_waitcnt lgkmcnt(0)'); smm(3)
    stamp(a, 7)
    for jt in range(3):
        for r in range(4*jt, 4*jt + 4): a(f'v_add_f32_dpp v{SA+r}, v{SA+r}, v{SA+r} row_ror:8 row_mask:0xf bank_mask:0xf')
        a(f'ds_write_b128 {vPSW}, v[{SA+4*jt}:{SA+4*jt+3}] offset:{1024*jt}')
    stamp(a, 1)
    a(f'''
    s_waitcnt lgkmcnt(0)
    s_barrier
    s_cmp_lg_u32 s10, 0
    s_cbranch_scc1 {NOFIN}
    ''')
    stamp(a, 2)
    for wv in range(4): a(f'ds_read_b128 v[{4+4*wv}:{7+4*wv}], {vPSX} offset:{3072*wv}')
    for wv in range(4): a(f'ds_read_b32 v{20+wv}, {vPSM} offset:{3072*wv}')
    D = 'row_mask:0xf bank_mask:0xf'
    a(f'''
    s_waitcnt lgkmcnt(6)
    v_pk_add_f32 v[4:5], v[4:5], v[8:9]
    v_pk_add_f32 v[6:7], v[6:7], v[10:11]
    s_waitcnt lgkmcnt(4)
    v_pk_add_f32 v[12:13], v[12:13], v[16:17]
    v_pk_add_f32 v[14:15], v[14:15], v[18:19]
    s_waitcnt lgkmcnt(0)
    v_pk_add_f32 v[20:21], v[20:21], v[22:23]
    v_pk_add_f32 v[4:5], v[4:5], v[12:13]
    v_pk_add_f32 v[6:7], v[6:7], v[14:15]
    v_add_f32 v8, v20, v21
    v_max3_f32 v9, v4, v5, v6
    v_max3_f32 v9, v9, v7, v8
    v_max_f32_dpp v9, v9, v9 row_ror:2 {D}
    v_max_f32_dpp v9, v9, v9 row_ror:4 {D}
    v_max_f32_dpp v9, v9, v9 row_ror:8 {D}
    v_sub_f32 v4, v4, v9
    v_sub_f32 v5, v5, v9
    v_sub_f32 v6, v6, v9
    v_sub_f32 v7, v7, v9
    v_sub_f32 v8, v8, v9
    v_exp_f32 v4, v4
    v_exp_f32 v5, v5
    v_exp_f32 v6, v6
    v_exp_f32 v7, v7
    v_exp_f32 v8, v8
    v_add_f32 v9, v4, v5
    v_add_f32 v10, v6, v7
    v_add_f32 v9, v9, v8
    v_add_f32 v9, v9, v10
    v_mov_b32_dpp v10, v8 quad_perm:[2,3,0,1] {D}
    v_add_f32_dpp v9, v9, v9 row_ror:2 {D}
    v_add_f32_dpp v9, v9, v9 row_ror:4 {D}
    v_add_f32_dpp v9, v9, v9 row_ror:8 {D}
    v_rcp_f32 v9, v9
    v_mul_f32 v4, v4, v9
    v_mul_f32 v5, v5, v9
    v_mul_f32 v6, v6, v9
    v_mul_f32 v7, v7, v9
    v_mul_f32 v8, v8, v9
    v_mul_f32 v10, v10, v9
    v_cvt_pk_bf16_f32 v4, v4, v5
    v_cvt_pk_bf16_f32 v5, v6, v7
    v_cvt_pk_bf16_f32 v8, v8, v10
    v_min_u32 v4, -2, v4
    v_min_u32 v5, -2, v5
    v_min_u32 v8, -2, v8
    ''')
    pubstore(a, [f'global_store_dwordx2 {vPX}, v[4:5], s[28:29]', 's_mov_b64 exec, s[32:33]',
                 f'global_store_dword {vPM}, v8, s[28:29]', 's_mov_b64 exec, -1'])
    stamp(a, 3)
    if prof:
        a(f'''s_cmp_lg_u32 s14, 0
        s_cbranch_scc1 {NOFIN}
        s_memtime s[50:51]
        s_lshl_b32 s19, s30, 2
        s_add_u32 s19, s19, {off['FL'] + 11264}
        v_mov_b32 v4, s19
        s_waitcnt lgkmcnt(0)
        s_sub_u32 s50, s50, s36
        v_mov_b32 v5, s50
        global_store_dword v4, v5, s[8:9]
        s_memrealtime s[50:51]
        s_waitcnt lgkmcnt(0)
        v_mov_b32 v6, s50
        global_store_dword v4, v6, s[8:9] offset:256''')
    a(f'{NOFIN}:')
    a('s_waitcnt vmcnt(0)')
    if len(XPOS) < 7: a('s_barrier')
    for f in range(len(XPOS), 7): a(f'global_load_dwordx4 v[{XK+4*f}:{XK+4*f+3}], {vXK2}, s[24:25] offset:{1024*f-4096}')
    for f in range(len(XPOS)): a(f'ds_read_b128 v[{XK+4*f}:{XK+4*f+3}], {vXK} offset:{40960+1024*f}')
    a('s_waitcnt lgkmcnt(0)')
    sadd(a, 24, 28672)
    if sleepA: a(f's_sleep {sleepA}')
    sadd(a, 22, 7168); sadd(a, 28, 10240)
    a(f'''
    s_add_u32 s30, s30, 1
    s_cmp_lt_u32 s30, 63
    s_cbranch_scc1 {LOOP}
    ''')
    stamp_dump(a, 0, 160)

def role_B(a, EXIT, prof=False, sleepB=0, sleepB2=0, zteam=None):
    RED, WL = 8192, 16384
    MO, U, ZP, ACC, WB_, ACL = 4, 32, 64, 80, 88, 104
    vMA, vMB, vL16, vWL, vPXr, vPMr, vU, vZB, vRW, vRR, vMS, vIDX = ['v%d' % i for i in range(108, 120)]
    tiles = [(0, 0), (1, 0), (0, 1), (1, 1), (2, 0), (3, 0), (2, 1), (3, 1)]
    a(f'''
    {'s_mov_b32 s14, s40' if zteam else 's_sub_u32 s14, s14, 16'}
    s_mul_i32 s19, s14, 458752
    s_mul_i32 s20, s10, 114688
    s_add_u32 s19, s19, s20
    v_lshlrev_b32 {vL16}, 4, v2
    v_add_u32 v3, s19, {vL16}
    s_mul_i32 s19, s10, 14336
    s_add_u32 s19, s19, {WL}
    v_add_u32 {vWL}, s19, {vL16}
    ''')
    sbase(a, 20, 8, off['WB'] + 7*14336)
    for f in range(14):
        a(f'global_load_dwordx4 v[{4+4*f}:{7+4*f}], v3, s[20:21] offset:{(f&3)*1024}')
        if f % 4 == 3: sadd(a, 20, 4096)
    for f in range(14):
        a(f's_waitcnt vmcnt({13-f})\nds_write_b128 {vWL}, v[{4+4*f}:{7+4*f}] offset:{1024*f}')
    for ti in range(7):
        hl, ct = tiles[ti]
        sbase(a, 20, 8, off['WB'] + (hl*2 + ct)*14336)
        n = 0
        for c in range(7):
            _, t, b = wreg(7*ti + c)
            for hf in range(2):
                a('global_load_dwordx4 %s[%d:%d], v3, s[20:21] offset:%d' % (t, b + 4*hf, b + 4*hf + 3, (n & 3)*1024))
                n += 1
                if n % 4 == 0: sadd(a, 20, 4096)
        a('s_waitcnt vmcnt(28)')
    a(f'''
    v_lshrrev_b32 v0, 4, v2        ; g
    v_and_b32 v74, 7, v2           ; i
    s_lshl_b32 s19, s10, 10
    v_add_u32 {vMA}, s19, {vL16}
    s_add_u32 s19, s10, 4
    s_min_u32 s19, s19, 6
    s_lshl_b32 s19, s19, 10
    v_add_u32 {vMB}, s19, {vL16}
    s_lshl_b32 s19, s10, 11
    v_add_u32 {vPXr}, s19, {vL16}
    s_lshl_b32 s19, s10, 9
    s_add_u32 s19, s19, 8192
    v_and_b32 v96, 511, {vL16}
    v_add_u32 {vPMr}, s19, v96
    s_lshl_b32 s19, s14, 15
    s_lshl_b32 s20, s10, 13
    s_add_u32 s19, s19, s20
    s_add_u32 s19, s19, 4096
    v_add_u32 {vU}, s19, {vL16}
    s_lshl_b32 s19, s14, 14
    s_lshl_b32 s20, s10, 12
    s_add_u32 s19, s19, s20
    v_add_u32 {vZB}, s19, {vL16}
    s_lshl_b32 s19, s10, 11
    s_add_u32 s19, s19, {RED}
    v_add_u32 {vRW}, s19, {vL16}
    v_lshrrev_b32 v96, 5, v2       ; ct
    v_bfe_u32 v97, v2, 3, 2        ; g'
    v_lshlrev_b32 v98, 4, v74      ; i*16
    v_lshl_add_u32 v99, v96, 10, v98
    v_lshl_add_u32 v99, v97, 8, v99
    v_add_u32 {vRR}, {RED}, v99
    s_lshl_b32 s19, s14, 9
    s_add_u32 s19, s19, 7168
    v_lshl_add_u32 v99, v96, 8, v98
    v_lshrrev_b32 v96, 1, v97
    v_lshl_add_u32 v99, v96, 7, v99
    v_and_b32 v96, 1, v97
    v_lshl_add_u32 v99, v96, 3, v99
    v_add_u32 {vMS}, s19, v99
    v_and_b32 v96, 8, v2
    v_mov_b32 {vIDX}, 0x4444
    v_mov_b32 v97, 0xeeee
    v_cmp_ne_u32 vcc, 0, v96
    v_cndmask_b32 {vIDX}, {vIDX}, v97, vcc
    ''')
    sbase(a, 22, 8, off['MEM2' if zteam else 'MEM']); sbase(a, 24, 8, off['U']); sbase(a, 26, 8, off['ZB']); sbase(a, 28, 8, off['PB'])
    def u_check(nxt):
        if not SYNC[0]: return
        P, Dn = a.lab('BUW'), a.lab('BUD')
        a(f'''
        s_add_u32 s19, s30, {nxt}
        s_lshr_b32 s19, s19, 1
        {P}:
        s_cmp_lt_u32 s19, s34
        s_cbranch_scc1 {Dn}
        s_lshl_b32 s20, s14, 3
        s_lshr_b32 s21, s10, 1
        s_lshl_b32 s21, s21, 2
        s_add_u32 s20, s20, s21
        s_add_u32 s20, s20, {off['FL'] + 112}
        v_lshlrev_b32 v0, 4, {vL16}
        v_and_b32 v0, 0x1fff, v0
        v_add_u32 v0, s20, v0
        global_load_dword v1, v0, s[8:9] sc0 sc1
        s_waitcnt vmcnt(0)
        v_cmp_lt_u32 vcc, 3, v1
        s_ff0_i32_b32 s34, vcc_lo
        s_sub_u32 s18, s18, 1
        s_cbranch_scc0 {P}
        s_branch {EXIT}
        {Dn}:
        ''')
    def u_loads():
        for f in range(8): a(f'global_load_dwordx4 v[{U+4*f}:{U+4*f+3}], {vU}, s[24:25] offset:{1024*f-4096}')
    a(f's_waitcnt lgkmcnt(0)\ns_mov_b32 s18, {SPIN}\ns_mov_b32 s30, 0\ns_mov_b32 s34, 0')
    a(f's_lshl_b32 s35, s10, 4\ns_add_u32 s35, s35, s14\ns_lshl_b32 s35, s35, 2\ns_add_u32 s35, s35, {off["FL"] + 12288 - (256 if zteam else 0)}')
    def prog():
        if SYNC[0]: a('s_lshl_b32 s19, s30, 8\ns_add_u32 s19, s19, s35\nv_mov_b32 v0, s19\nv_mov_b32 v1, 1\nglobal_store_dword v0, v1, s[8:9] sc0 sc1')
    a('s_waitcnt vmcnt(0)')
    LOOP, NOFIN, PP, PD = a.lab('BLOOP'), a.lab('BNOFIN'), a.lab('BPP'), a.lab('BPD')
    stamp_init(a)
    if zteam: a(f'v_mov_b32 v{U}, -1')
    a(f'{LOOP}:')
    if zteam:
        poll_mem(a, EXIT, vMA, vMB, U, 'sc0 sc1', prog)
        sadd(a, 22, 7168)
        a(f'global_load_dwordx4 v[{U}:{U+3}], {vMA}, s[22:23] sc0 sc1\nglobal_load_dwordx4 v[{U+4}:{U+7}], {vMB}, s[22:23] sc0 sc1')
    else:
        u_check(0)
        poll_mem(a, EXIT, vMA, vMB, ACC)
    stamp(a, 0)
    for c in range(7): a(f'ds_read_b128 v[{MO+4*c}:{MO+4*c+3}], {vL16} offset:{1024*c}')
    def wl_read(c):
        wb = WB_ + 8*(c & 1)
        a(f'ds_read_b128 v[{wb}:{wb+3}], {vWL} offset:{2048*c}\nds_read_b128 v[{wb+4}:{wb+7}], {vWL} offset:{2048*c+1024}')
    wl_read(0); wl_read(1)
    for r in range(0, 8, 2): a(f'v_mov_b64 v[{ACC+r}:{ACC+r+1}], 0')
    for r in range(0, 4, 2): a(f'v_mov_b64 v[{ACL+r}:{ACL+r+1}], 0')
    def post(ti, ac):
        hl, ct = tiles[ti]
        z = ZP + 4*((hl >> 1)*2 + ct) + 2*(hl & 1)
        L = [f'v_cvt_pk_bf16_f32 v{z}, v{ac}, v{ac+1}\nv_cvt_pk_bf16_f32 v{z+1}, v{ac+2}, v{ac+3}']
        if ti < 5: L.append(f'v_mov_b64 v[{ac}:{ac+1}], 0\nv_mov_b64 v[{ac+2}:{ac+3}], 0')
        return L
    pend = []
    for m in range(49):
        t, c = divmod(m, 7)
        if t == 0: a(f's_waitcnt lgkmcnt({10-c})')
        ac = ACC + 4*(t & 1)
        a(f'v_smfmac_f32_16x16x64_bf16 v[{ac}:{ac+3}], v[{MO+4*c}:{MO+4*c+3}], {wreg(m)[0]}, {vIDX}')
        if m in UPOS and not zteam: f = UPOS.index(m); a(f'global_load_dwordx4 v[{U+4*f}:{U+4*f+3}], {vU}, s[24:25] offset:{1024*f-4096}')
        if c == 2 and t >= 1: pend = post(t - 1, ACC + 4*((t - 1) & 1))
        if pend: a(pend.pop(0))
        if c == 6:
            wb = WB_ + 8*(t & 1)
            a('s_waitcnt lgkmcnt(%d)' % (2 if t < 6 else 0))
            a(f'v_smfmac_f32_16x16x64_bf16 v[{ACL}:{ACL+3}], v[{MO+4*t}:{MO+4*t+3}], v[{wb}:{wb+7}], {vIDX}')
            if t + 2 < 7: wl_read(t + 2)
    for p in post(6, ACC) + post(7, ACL): a(p)
    def zb_stores(sc):
        for f in range(4): a(f'global_store_dwordx4 {vZB}, v[{ZP+4*f}:{ZP+4*f+3}], s[26:27] offset:{1024*f}{sc}')
    if zteam:
        a('s_waitcnt vmcnt(0)')
        prog()
        if prof:
            a(f'''s_memrealtime s[50:51]
            s_lshl_b32 s52, s30, 2
            s_lshl_b32 s53, s14, 8
            s_add_u32 s52, s52, s53
            s_add_u32 s52, s52, {off['XK'] + 64*28672 + 16384}
            v_mov_b32 v3, s52
            s_waitcnt lgkmcnt(0)
            v_mov_b32 v4, s50
            global_store_dword v3, v4, s[8:9]''')
        zb_stores(' sc0 sc1')
        sadd(a, 26, 229376)
        a(f's_barrier\ns_add_u32 s30, s30, 1\ns_cmp_lt_u32 s30, 63\ns_cbranch_scc1 {LOOP}\ns_waitcnt vmcnt(0)')
        prog()
        a(f's_branch {zteam}')
        return
    if not SYNC[0] and not WT[0] & 16: zb_stores('')
    stamp(a, 1)
    BEND = a.lab('BEND')
    a(f's_cmp_eq_u32 s30, 63\ns_cbranch_scc1 {BEND}')
    if sleepB: a(f's_sleep {sleepB}')
    if PROF[0]: a('s_waitcnt vmcnt(0)')
    stamp(a, 7)
    a(f'{PP}:')
    for k in range(2): a(f'global_load_dwordx4 v[{4+4*k}:{7+4*k}], {vPXr}, s[28:29] offset:{1024*k} sc1')
    a(f'global_load_dwordx4 v[12:15], {vPMr}, s[28:29] sc1')
    a(f'''
    s_waitcnt vmcnt(0)
    v_max3_u32 v0, v4, v5, v6
    v_max3_u32 v1, v7, v8, v9
    v_max3_u32 v0, v0, v10, v11
    v_max3_u32 v1, v1, v12, v13
    v_max3_u32 v0, v0, v14, v15
    v_max_u32 v0, v0, v1
    v_cmp_eq_u32 vcc, -1, v0
    s_cbranch_vccz {PD}
    s_sub_u32 s18, s18, 1
    s_cbranch_scc0 {PP}
    s_branch {EXIT}
    {PD}:
    ''')
    O = WB_
    stamp(a, 2)
    for k in range(3):
        for eo in (1, 0):
            for ct in range(2):
                o = O + 4*ct + 8*eo
                c = '0' if k == 0 else f'v[{o}:{o+3}]'
                if k < 2: A_ = U + 4*(2*(2*k + eo) + ct)
                else: A_ = ZP + 4*(2*eo + ct)
                B_ = 4 + 4*k
                a(f'v_mfma_f32_16x16x32_bf16 v[{o}:{o+3}], v[{A_}:{A_+3}], v[{B_}:{B_+3}], {c}')
    sadd(a, 24, 458752); sadd(a, 26, 229376); sadd(a, 28, 10240)
    for ct in range(2):
        for r in range(4): a(f'v_add_f32_dpp v{O+4*ct+r}, v{O+8+4*ct+r}, v{O+4*ct+r} row_ror:8 row_mask:0xf bank_mask:0xf')
        a(f'ds_write_b128 {vRW}, v[{O+4*ct}:{O+4*ct+3}] offset:{1024*ct}')
    a(f'''
    s_waitcnt lgkmcnt(0)
    s_barrier
    s_cmp_lg_u32 s10, 0
    s_cbranch_scc1 {NOFIN}
    ''')
    stamp(a, 3)
    for wv in range(4): a(f'ds_read_b128 v[{4+4*wv}:{7+4*wv}], {vRR} offset:{2048*wv}')
    a('''
    s_waitcnt lgkmcnt(2)
    v_pk_add_f32 v[4:5], v[4:5], v[8:9]
    v_pk_add_f32 v[6:7], v[6:7], v[10:11]
    s_waitcnt lgkmcnt(0)
    v_pk_add_f32 v[12:13], v[12:13], v[16:17]
    v_pk_add_f32 v[14:15], v[14:15], v[18:19]
    v_pk_add_f32 v[4:5], v[4:5], v[12:13]
    v_pk_add_f32 v[6:7], v[6:7], v[14:15]
    v_cvt_pk_bf16_f32 v4, v4, v5
    v_cvt_pk_bf16_f32 v5, v6, v7
    v_min_u32 v4, -2, v4
    v_min_u32 v5, -2, v5
    ''')
    if WT[0] & 2: a(f'global_store_dwordx2 {vMS}, v[4:5], s[22:23] sc0 sc1')
    else: pubstore(a, [f'global_store_dwordx2 {vMS}, v[4:5], s[22:23]'])
    stamp(a, 4)
    a(f'{NOFIN}:\ns_barrier')
    if sleepB2: a(f's_sleep {sleepB2}')
    sadd(a, 22, 7168)
    a(f's_add_u32 s30, s30, 1\ns_branch {LOOP}')
    a(f'{BEND}:')
    if SYNC[0]: zb_stores(' sc0 sc1')
    a('s_waitcnt vmcnt(0)')
    prog()
    stamp_dump(a, 16, 192)
    a(f's_branch {EXIT}')

def role_P(a, EXIT, dist=int(os.environ.get('DIST', 3))):
    LOOP, PW, GO, CP, NP = a.lab('PLOOP'), a.lab('PWAIT'), a.lab('PGO'), a.lab('PCP'), a.lab('PNP')
    a(f'''
    s_sub_u32 s14, s14, 30
    s_lshl_b32 s14, s14, 2
    s_add_u32 s14, s14, s10          ; pw 0..7
    s_mul_i32 s19, s14, 3584
    v_min_u32 v5, 27, v2
    v_lshlrev_b32 v5, 7, v5
    v_add_u32 v5, s19, v5            ; x
    s_mul_i32 s19, s14, 1280
    v_min_u32 v6, 9, v2
    v_lshlrev_b32 v6, 7, v6
    v_add_u32 v6, s19, v6            ; PB
    s_mul_i32 s19, s14, 896
    v_min_u32 v7, 6, v2
    v_lshlrev_b32 v7, 7, v7
    v_add_u32 v7, s19, v7            ; MEM
    v_min_u32 v8, 55, v2
    v_lshlrev_b32 v8, 4, v8
    v_add_u32 v8, s19, v8            ; slice
    v_add_u32 v9, {off['MEM2'] - off['MEM']}, v8
    s_mov_b32 s18, {SPIN}
    s_mov_b32 s30, 0
    ''')
    sbase(a, 26, 8, off['XK'])
    sbase(a, 22, 8, off['MEM'] + 7168); sbase(a, 28, 8, off['PB']); sbase(a, 20, 8, off['MEM'] - dist*7168)
    a(f'''
    {LOOP}:
    s_cmp_le_u32 s30, {dist}
    s_cbranch_scc1 {GO}
    {PW}:
    global_load_dwordx4 v[16:19], v8, s[20:21] sc1
    s_waitcnt vmcnt(0)
    v_max3_u32 v0, v16, v17, v18
    v_max_u32 v0, v0, v19
    v_cmp_eq_u32 vcc, -1, v0
    s_cbranch_vccz {CP}
    s_sleep 2
    s_sub_u32 s18, s18, 1
    s_cbranch_scc0 {PW}
    s_branch {EXIT}
    {CP}:
    global_store_dwordx4 v9, v[16:19], s[20:21] sc0 sc1
    {GO}:
    s_cmp_ge_u32 s30, 63
    s_cbranch_scc1 {NP}
    global_load_dword v10, v7, s[22:23]
    global_load_dword v11, v6, s[28:29]
    global_load_dword v12, v5, s[26:27]
    {NP}:
    ''')
    sadd(a, 22, 7168); sadd(a, 28, 10240); sadd(a, 26, 28672); sadd(a, 20, 7168)
    a(f'''
    s_add_u32 s30, s30, 1
    s_cmp_lt_u32 s30, {64 + dist}
    s_cbranch_scc1 {LOOP}
    s_branch {EXIT}
    ''')

def gen_chain(a, name, prof=False, worker=None, sleepA=0, sleepB=0, sleepB2=0):
    kernel_begin(a, name)
    EXIT, BR, WORK = a.lab('CEXIT'), a.lab('BROLE'), a.lab('CWORK')
    a('''
    s_load_dwordx2 s[4:5], s[0:1], 0
    s_load_dwordx2 s[6:7], s[0:1], 96
    s_load_dwordx2 s[8:9], s[0:1], 104
    v_lshrrev_b32 v1, 6, v0
    v_and_b32 v2, 63, v0
    v_readfirstlane_b32 s10, v1
    s_waitcnt lgkmcnt(0)
    ''')
    if prof: a('s_memtime s[36:37]\ns_waitcnt lgkmcnt(0)')
    elect(a, WORK if worker else EXIT)
    if prof: a('s_memtime s[38:39]\ns_waitcnt lgkmcnt(0)')
    PR = a.lab('PROLE')
    a(f's_cmp_ge_u32 s14, 30\ns_cbranch_scc1 {PR}')
    a(f's_cmp_ge_u32 s14, 16\ns_cbranch_scc1 {BR}')
    role_A(a, EXIT, prof, sleepA)
    if prof:
        a(f'''
        s_memtime s[40:41]
        s_waitcnt lgkmcnt(0)
        s_cmp_lg_u32 s14, 0
        s_cbranch_scc1 {EXIT}
        s_cmp_lg_u32 s10, 0
        s_cbranch_scc1 {EXIT}
        s_sub_u32 s38, s38, s36
        s_sub_u32 s34, s34, s36
        s_sub_u32 s40, s40, s36
        v_mov_b32 v4, s38
        v_mov_b32 v5, s34
        v_mov_b32 v6, s40
        v_mov_b32 v7, s17
        v_mov_b32 v3, 128
        global_store_dwordx4 v3, v[4:7], s[6:7]
        ''')
    a(f's_branch {EXIT}\n{BR}:')
    role_B(a, EXIT, prof, sleepB, sleepB2)
    a(f'{PR}:')
    if WT[0] & 64: a(f's_branch {EXIT}')
    role_P(a, EXIT)
    if worker:
        a(f'{WORK}:'); worker(a, EXIT)
    a(f'{EXIT}:\ns_endpgm')

if __name__ == '__main__':
    import sys
    av = [int(x) for x in sys.argv[2:]] + [0]*5
    PROF[0] = bool(av[3]); WT[0] = av[4]
    a = Asm()
    a.raw(f'; @launch kernel=chain_kernel grid=(256,1,1) block=(256,1,1) lds={LDS_CHAIN}')
    a.raw('.amdgcn_target "amdgcn-amd-amdhsa--gfx950"\n.text')
    gen_chain(a, 'chain_kernel', prof=True, sleepA=av[0], sleepB=av[1], sleepB2=av[2])
    a.raw('.section .rodata,"a"'); a.raw(kdesc('chain_kernel'))
    open(sys.argv[1], 'w').write(a.text())
```

```python
from asmlib import *
import os
from layout import off
from chain import sadd, sbase
from prep import f2u, LOG2E
LDS_GEMM = 3*28672
QSCALE = 28**-0.5*LOG2E
SC = ['']
ACC, WF, EP = 64, 128, 160
vW, vL, vLn, vX = 'v4', 'v5', 'v6', 'v7'
vO = ['v8', 'v9', 'v10', 'v11']
def xreg(tt, ks): b = (tt*14 + ks)*4; return f'a[{b}:{b+3}]'

def dma(a):
    a('s_mov_b32 m0, s44')
    for f in range(4): a(f'global_load_lds_dwordx4 {vW}, s[8:9] offset:{1024*f}')
    a(f's_add_u32 m0, s44, 4096\nv_add_u32 {vW}, 4096, {vW}')
    for f in range(3): a(f'global_load_lds_dwordx4 {vW}, s[8:9] offset:{1024*f}')
    a(f'''v_add_u32 {vW}, {28672-4096}, {vW}
    s_add_u32 s44, s44, 28672
    s_cmp_ge_u32 s44, {LDS_GEMM}
    s_cselect_b32 s45, {LDS_GEMM}, 0
    s_sub_u32 s44, s44, s45''')

def epilogue(ttype, aset):
    L = []
    for j in range(4):
        if ttype == 'T': t0, t1 = (j, 0), (j, 1)
        else: t0, t1 = (2*(j >> 1), j & 1), (2*(j >> 1) + 1, j & 1)
        e = EP + 16*(j & 1)
        for k, (tt, nt) in enumerate((t0, t1)):
            ac = ACC + 32*aset + 4*(tt*2 + nt)
            L.append(f'v_pk_mul_f32 v[{e+4*k}:{e+4*k+1}], v[{ac}:{ac+1}], s[42:43]\nv_pk_mul_f32 v[{e+4*k+2}:{e+4*k+3}], v[{ac+2}:{ac+3}], s[42:43]')
        L.append(f'v_cvt_pk_bf16_f32 v{e+8}, v{e}, v{e+1}\nv_cvt_pk_bf16_f32 v{e+9}, v{e+2}, v{e+3}')
        L.append(f'v_cvt_pk_bf16_f32 v{e+10}, v{e+4}, v{e+5}\nv_cvt_pk_bf16_f32 v{e+11}, v{e+6}, v{e+7}')
        L.append(f'global_store_dwordx4 {vO[j]}, v[{e+8}:{e+11}], s[8:9]{SC[0]}\nv_add_u32 {vO[j]}, s41, {vO[j]}')
    return L

def wread(a, ks_abs):
    pass

def gemm_body(a, ttype):
    LOOP = a.lab('GL' + ttype)
    def rd(kap, ks):
        sl = WF + 8*(kap & 3)
        v = vL if ks < 14 else vLn; k = ks % 14
        a(f'ds_read_b128 v[{sl}:{sl+3}], {v} offset:{1024*k}\nds_read_b128 v[{sl+4}:{sl+7}], {v} offset:{14336+1024*k}')
    for k in range(3): rd(k, k)
    a('s_mov_b32 s47, 0')
    a(f'{LOOP}:')
    for st in range(2):
        ep = epilogue(ttype, st ^ 1)
        SK = a.lab('GSK')
        for ks in range(14):
            kap = st*14 + ks
            sl = WF + 8*(kap & 3)
            a('s_waitcnt lgkmcnt(4)')
            n = 0
            for tt in range(4):
                for nt in range(2):
                    ac = ACC + 32*st + 4*(tt*2 + nt)
                    c = '0' if ks == 0 else f'v[{ac}:{ac+3}]'
                    w = f'v[{sl+4*nt}:{sl+4*nt+3}]'
                    if ttype == 'T': a(f'v_mfma_f32_16x16x32_bf16 v[{ac}:{ac+3}], {w}, {xreg(tt, ks)}, {c}')
                    else: a(f'v_mfma_f32_16x16x32_bf16 v[{ac}:{ac+3}], {xreg(tt, ks)}, {w}, {c}')
                    n += 1
                    if n == 1: rd(kap + 3, ks + 3)
                    elif ks >= 1 and ep and n in (3, 5, 7):
                        g = ep.pop(0)
                        if st == 0 and 'global_store' in g:
                            a('s_mov_b64 exec, s[48:49]'); a(g); a('s_mov_b64 exec, -1')
                        else: a(g)
            if ks == 8:
                assert not ep
                a('s_waitcnt vmcnt(4)\ns_barrier')
                dma(a)
        a(f'''v_mov_b32 {vL}, {vLn}
        v_add_u32 {vLn}, 28672, {vLn}
        v_subrev_u32 v12, {LDS_GEMM}, {vLn}
        v_min_u32 {vLn}, v12, {vLn}
        s_mov_b64 s[48:49], -1''')
    if ttype == 'T' and int(os.environ.get('GSLEEP', 0)): a(f"s_sleep {os.environ['GSLEEP']}")
    a(f'''
    s_add_u32 s47, s47, 1
    s_cmp_lt_u32 s47, s46
    s_cbranch_scc1 {LOOP}
    ''')
    for g in epilogue(ttype, 1): a(g)
    a('s_waitcnt vmcnt(0) lgkmcnt(0)')
    if SC[0]:
        a(f'''
        s_lshl_b32 s12, s40, 2
        s_add_u32 s12, s12, s10
        s_lshl_b32 s12, s12, 8
        s_lshr_b32 s13, s39, 3
        s_lshl_b32 s13, s13, 2
        s_add_u32 s12, s12, s13
        s_add_u32 s12, s12, {off['FL']}
        v_lshl_add_u32 v12, v2, 2, s12
        s_min_u32 s13, s46, 4
        v_mov_b32 v13, s13
        s_lshr_b32 s13, s46, 2
        s_max_u32 s13, s13, 1
        v_cmp_gt_u32 vcc, s13, v2
        s_mov_b64 exec, vcc
        global_atomic_add v12, v13, s[8:9] sc1
        s_mov_b64 exec, -1
        ''')
    a('s_barrier')

def gemm_task(a, END, nst=16):
    TQ, TU, TV, GO, UT = a.lab('GTQ'), a.lab('GTU'), a.lab('GTV'), a.lab('GGO'), a.lab('GUT')
    a(f'''
    s_lshl_b32 s12, s40, 4
    s_lshl_b32 s13, s10, 2
    s_add_u32 s12, s12, s13            ; tt0
    s_lshr_b32 s13, s12, 1             ; seg0
    v_lshlrev_b32 v3, 4, v2
    s_mul_i32 s14, s12, 14336
    v_add_u32 {vX}, s14, v3
    s_mul_i32 s14, s39, 28672
    s_mul_i32 s15, s10, 7168
    s_add_u32 s14, s14, s15
    s_add_u32 s14, s14, {off['WA']}
    v_add_u32 {vW}, s14, v3
    s_mov_b32 s44, s15
    ''')
    dma(a); dma(a)
    n = 0
    for tt in range(4):
        for ks in range(14):
            a(f'global_load_dwordx4 {xreg(tt, ks)}, {vX}, s[8:9] offset:{(n&3)*1024}')
            n += 1
            if n % 4 == 0: a(f'v_add_u32 {vX}, 4096, {vX}')
            if n == 40: a('s_waitcnt vmcnt(30)')
    a(f'''
    s_mov_b32 s42, 1.0
    s_mov_b32 s46, {nst//2 if nst else 's38'}
    s_mov_b64 s[48:49], 0
    v_mov_b32 {vL}, v3
    v_add_u32 {vLn}, 28672, v3
    s_cmp_ge_u32 s39, 480
    s_cbranch_scc1 {TV}
    s_cmp_ge_u32 s39, 448
    s_cbranch_scc1 {TQ}
    s_cmp_ge_u32 s39, 224
    s_cbranch_scc1 {TU}
    s_mul_i32 s14, s12, 229376
    s_lshl_b32 s15, s39, 10
    s_add_u32 s14, s14, s15
    s_add_u32 s14, s14, {off['F']}
    s_mov_b32 s15, 229376
    s_mov_b32 s16, 458752
    s_mov_b32 s41, 1024
    s_mov_b32 s17, 0
    s_branch {GO}
    {TQ}:
    s_sub_u32 s15, s39, 448
    s_lshl_b32 s15, s15, 17
    s_lshl_b32 s14, s12, 10
    s_add_u32 s14, s14, s15
    s_add_u32 s14, s14, {off['Q']}
    s_mov_b32 s15, 1024
    s_mov_b32 s16, 2048
    s_mov_b32 s41, 131072
    s_mov_b32 s17, 0
    s_cmp_ge_u32 s39, 464
    s_cselect_b32 s42, 1.0, 0x{f2u(QSCALE):08x}
    s_branch {GO}
    {TU}:
    s_sub_u32 s15, s39, 224
    s_lshl_b32 s15, s15, 11
    s_mul_i32 s14, s13, 458752
    s_add_u32 s14, s14, s15
    s_add_u32 s14, s14, {off['U']}
    s_mov_b32 s15, 1024
    s_mov_b32 s16, 458752
    s_mov_b32 s41, 2048
    s_mov_b32 s17, 1
    s_branch {GO}
    {TV}:
    s_sub_u32 s15, s39, 480
    s_lshl_b32 s15, s15, 17
    s_lshl_b32 s14, s13, 10
    s_add_u32 s14, s14, s15
    s_add_u32 s14, s14, {off['VT']}
    s_mov_b32 s15, 65536
    s_mov_b32 s16, 1024
    s_mov_b32 s41, 131072
    s_mov_b32 s17, 1
    {GO}:
    s_mov_b32 s43, s42
    v_add_u32 {vO[0]}, s14, v3
    v_add_u32 {vO[1]}, s15, {vO[0]}
    v_add_u32 {vO[2]}, s16, {vO[0]}
    v_add_u32 {vO[3]}, s15, {vO[2]}
    s_waitcnt vmcnt(0)
    s_barrier
    s_cmp_lg_u32 s17, 0
    s_cbranch_scc1 {UT}
    ''')
    gemm_body(a, 'T')
    a(f's_branch {END}\n{UT}:')
    gemm_body(a, 'U')
    a(f's_branch {END}')

def gen_gemm(a, name):
    kernel_begin(a, name)
    END = a.lab('K2END')
    a(f'''
    s_load_dwordx2 s[8:9], s[0:1], 104
    v_lshrrev_b32 v1, 6, v0
    v_and_b32 v2, 63, v0
    v_readfirstlane_b32 s10, v1
    s_cmp_ge_u32 s2, 256
    s_cbranch_scc1 {END}
    s_and_b32 s39, s2, 31
    s_cmp_eq_u32 s39, 31
    s_cbranch_scc1 {END}
    s_lshl_b32 s39, s39, 4
    s_lshr_b32 s40, s2, 5
    s_waitcnt lgkmcnt(0)
    ''')
    gemm_task(a, END)
    a(f'{END}:\ns_endpgm')
```

```python
import numpy as np
D = 448; S = 2048; H = 16; DH = 256; NSEG = 64; SEG = 32; M = 8
def a_of(gb, ep):
    return 32*(ep >> 3) + 16*(gb >> 1) + 8*((ep >> 1) & 1) + 4*(gb & 1) + 2*((ep & 7) >> 2) + (ep & 1)
PERM64 = np.array([a_of((p >> 3) & 3, (p & 7) + 8*(p >> 5)) for p in range(64)])
assert sorted(PERM64.tolist()) == list(range(64))
def al(x, a=256): return (x + a - 1)//a*a
off = {}
cur = 0
def alloc(name, n):
    global cur
    off[name] = cur
    cur = al(cur + n, 4096)
alloc('XP', S*D*2)
alloc('WA', 16*401408)
alloc('WB', 16*401408)
alloc('WQ', 96*14336)
alloc('WOA', 28*16*1024)
alloc('F', 16*S*D*2)
alloc('U', 64*458752)
alloc('Q', S*512*2)
alloc('K', S*512*2)
alloc('VT', 512*S*2)
alloc('OA', S*D*4)
alloc('MEM', 65*7168)
alloc('PB', 64*10240)
alloc('ZB', 64*229376)
alloc('G', S*4)
alloc('MEM2', 65*7168)
alloc('XK', 65*28672)
alloc('FL', 28672)
WS_END = cur
lane = np.arange(64); LN = lane & 15; LG = lane >> 4
KIDX = np.zeros((7, 2, 64, 8), np.int64)
for c in range(7):
    for hf in range(2):
        for e in range(8):
            KIDX[c, hf, :, e] = 64*c + np.array([a_of(g, e + 8*hf) for g in LG])
def img_cols(W):
    N = W.shape[1]
    nt = np.arange(N//16)
    return W[KIDX[None], (16*nt[:, None, None, None, None] + LN[None, None, None, :, None])]
def make_WA(A): return np.stack([img_cols(A[h]) for h in range(16)])
def make_WB(M2):
    t = np.stack([img_cols(M2[h]) for h in range(16)])
    t = t.reshape(4, 4, 14, 2, 7, 2, 64, 8)
    return np.ascontiguousarray(t.transpose(2, 0, 1, 3, 4, 5, 6, 7))
def make_U(Uf):
    t = Uf.reshape(4, 4, 64, 32, 14, 2, 16)
    out = np.zeros((64, 14, 4, 4, 2, 64, 8), Uf.dtype)
    for e in range(8):
        sel = t[:, :, :, 16*(e >> 2) + 4*LG + (e & 3), :, :, LN]
        out[..., e] = np.transpose(sel, (3, 4, 1, 2, 5, 0))
    return out
def make_XP(x): return img_cols(np.ascontiguousarray(x.T))
def make_XK(x):
    o = np.zeros((64, 4, 7, 64, 8), x.dtype)
    xs = x.reshape(64, 2, 16, 4, 112)
    for e in range(8):
        for jt in range(2):
            for q in range(3): o[:, :, 3*jt + q, :, e] = xs[:, jt, LN, :, 32*q + 8*LG + e].transpose(1, 2, 0)
        o[:, :, 6, :, e] = xs[:, e >> 2, LN, :, 96 + 4*LG + (e & 3)].transpose(1, 2, 0)
    return o
def mem_to_atoms(mem): return np.ascontiguousarray(mem.reshape(8, 56, 8).transpose(1, 0, 2))
def atoms_to_mem(at): return np.ascontiguousarray(at.reshape(56, 8, 8).transpose(1, 0, 2)).reshape(8, 448)
if __name__ == "__main__":
    print(off, WS_END)
```

```python
from asmlib import *
from layout import off
import chain, gemm, atta, xrow2
SLOT = chain.LDS_CHAIN - 32
import os
N_U0, N_Z = 112, 14
N_U, N_QKV, N_F, N_ATT, N_X = 196, 48, 112, 128, int(os.environ.get("NX", 512))
def worker(a, EXIT):
    LOOP, SKIP, T0, T1, T2, T3, T4, GO, TZ = [a.lab(x) for x in ('WLOOP', 'WSKIP', 'WT0', 'WT1', 'WT2', 'WT3', 'WT4', 'WGO', 'WTZ')]
    a(f'''
    s_load_dwordx2 s[90:91], s[0:1], 88
    s_waitcnt lgkmcnt(0)
    {LOOP}:
    s_cmp_lg_u32 s10, 0
    s_cbranch_scc1 {SKIP}
    s_mov_b64 exec, 1
    v_mov_b32 v3, 72
    v_mov_b32 v4, 1
    global_atomic_add v5, v3, v4, s[6:7] sc0 sc1
    v_mov_b32 v3, {SLOT}
    s_waitcnt vmcnt(0)
    ds_write_b32 v3, v5
    s_waitcnt lgkmcnt(0)
    s_mov_b64 exec, -1
    {SKIP}:
    s_barrier
    v_mov_b32 v3, {SLOT}
    ds_read_b32 v4, v3
    s_waitcnt lgkmcnt(0)
    v_readfirstlane_b32 s40, v4
    s_cmp_ge_u32 s40, {N_U0}
    s_cbranch_scc1 {T0}
    s_lshl_b32 s39, s40, 1
    s_add_u32 s39, s39, 224
    s_mov_b32 s40, 0
    s_mov_b32 s38, 1
    s_branch {GO}
    {T0}:
    s_sub_u32 s40, s40, {N_U0}
    s_cmp_lt_u32 s40, {N_Z}
    s_cbranch_scc1 {TZ}
    s_sub_u32 s40, s40, {N_Z}
    s_cmp_ge_u32 s40, {N_U}
    s_cbranch_scc1 {T1}
    s_mul_i32 s12, s40, 2341
    s_lshr_b32 s12, s12, 16            ; /28
    s_mul_i32 s13, s12, 28
    s_sub_u32 s39, s40, s13
    s_lshl_b32 s39, s39, 3
    s_add_u32 s39, s39, 224
    s_add_u32 s40, s12, 1
    s_mov_b32 s38, 4
    s_branch {GO}
    {T1}:
    s_sub_u32 s40, s40, {N_U}
    s_cmp_ge_u32 s40, {N_QKV}
    s_cbranch_scc1 {T2}
    s_mul_i32 s12, s40, 10923
    s_lshr_b32 s12, s12, 16            ; /6
    s_mul_i32 s13, s12, 6
    s_sub_u32 s39, s40, s13
    s_lshl_b32 s39, s39, 3
    s_add_u32 s39, s39, 448
    s_mov_b32 s40, s12
    s_mov_b32 s38, 4
    s_branch {GO}
    {T2}:
    s_sub_u32 s40, s40, {N_QKV}
    s_cmp_ge_u32 s40, {N_F}
    s_cbranch_scc1 {T3}
    s_mul_i32 s12, s40, 4682
    s_lshr_b32 s12, s12, 16            ; /14
    s_mul_i32 s13, s12, 14
    s_sub_u32 s39, s40, s13
    s_lshl_b32 s39, s39, 4
    s_mov_b32 s40, s12
    s_mov_b32 s38, 8
    {GO}:
    ''')
    gemm.gemm_task(a, LOOP, nst=0)
    a(f'''
    {T3}:
    s_sub_u32 s40, s40, {N_F}
    s_cmp_ge_u32 s40, {N_ATT}
    s_cbranch_scc1 {T4}
    ''')
    atta.atta_task(a, LOOP)
    a(f'''
    {T4}:
    s_sub_u32 s40, s40, {N_ATT}
    s_cmp_ge_u32 s40, {N_X}
    s_cbranch_scc1 {EXIT}
    ''')
    xrow2.xrow_task(a, LOOP)
    a(f'{TZ}:')
    chain.role_B(a, EXIT, prof=xrow2.XPROF[0], zteam=LOOP)
def gen(a, name, **kw):
    xrow2.XPROF[0] = kw.get('prof', False)
    chain.SYNC[0] = True; gemm.SC[0] = ' sc0 sc1'; atta.SYNC[0] = True
    chain.gen_chain(a, name, worker=worker, **kw)
```

```python
from asmlib import *
from layout import off
from chain import sadd, sbase
import struct
def f2u(f): return struct.unpack('<I', struct.pack('<f', f))[0]
LOG2E = 1.4426950408889634
N_FOLD, N_XP, N_WQ, N_WOA, N_FILL, N_GATE, N_XK = 224, 32, 24, 7, 24, 32, 64
K1_GRID = N_FOLD + N_XP + N_WQ + N_WOA + N_FILL + N_GATE + N_XK + 1

def fold_task(a, END):
    M1, BD = a.lab('FM1'), a.lab('FBD')
    a(f'''
    s_load_dwordx2 s[12:13], s[0:1], 40     ; Wq
    s_load_dwordx2 s[14:15], s[0:1], 48     ; Wk
    s_load_dwordx2 s[16:17], s[0:1], 56     ; Wv
    s_load_dwordx2 s[18:19], s[0:1], 64     ; Wo
    s_cmp_ge_u32 s2, 112
    s_cselect_b32 s20, 1, 0                 ; mat
    s_mul_i32 s21, s20, 112
    s_sub_u32 s21, s2, s21
    s_mul_i32 s22, s21, 9363
    s_lshr_b32 s22, s22, 16                 ; h = t/7
    s_mul_i32 s23, s22, 7
    s_sub_u32 s23, s21, s23
    s_lshl_b32 s23, s23, 2
    s_add_u32 s23, s23, s10                 ; nt
    v_and_b32 v3, 15, v2                    ; n_l / rho
    v_lshrrev_b32 v4, 4, v2                 ; g
    ; kappa(rho)
    v_lshrrev_b32 v5, 3, v3
    v_lshlrev_b32 v5, 4, v5
    v_bfe_u32 v6, v3, 1, 1
    v_lshl_add_u32 v5, v6, 3, v5
    v_bfe_u32 v6, v3, 2, 1
    v_lshl_add_u32 v5, v6, 2, v5
    v_and_b32 v6, 1, v3
    v_add_u32 v5, v5, v6
    s_lshl_b32 s24, s22, 9
    v_lshlrev_b32 v5, 13, v5
    v_lshl_add_u32 v5, v4, 4, v5
    v_add_u32 v5, s24, v5
    v_add_u32 v6, 16384, v5                 ; tau1
    s_lshl_b32 s25, s23, 4
    v_add_u32 v7, s25, v3                   ; n
    s_waitcnt lgkmcnt(0)
    s_cmp_lg_u32 s20, 0
    s_cbranch_scc1 {M1}
    v_lshlrev_b32 v8, 13, v7
    v_lshl_add_u32 v8, v4, 4, v8
    v_add_u32 v8, s24, v8
    ''')
    for ks in range(8): a(f'global_load_dwordx4 v[{16+4*ks}:{19+4*ks}], v8, s[14:15] offset:{64*ks}')
    a(f'''
    s_mul_i32 s26, s22, 401408
    s_mul_i32 s27, s23, 14336
    s_add_u32 s26, s26, s27
    s_add_u32 s26, s26, {off['WA']}
    s_mov_b32 s28, 0x{f2u(LOG2E/16):08x}
    s_branch {BD}
    {M1}:
    s_mul_i32 s26, s22, 229376
    s_add_u32 s26, s26, 3584
    v_mul_u32_u24 v8, 7168, v4
    v_lshl_add_u32 v8, v7, 1, v8
    v_add_u32 v8, s26, v8
    ''')
    for ks in range(8):
        for j in range(8):
            a(f'global_load_ushort v{64+8*ks+j}, v8, s[18:19] offset:{(j-4)*896}')
        if ks < 7: a('v_add_u32 v8, 28672, v8')
        if ks == 5: a('s_waitcnt vmcnt(16)')
    a('s_waitcnt vmcnt(0)')
    for r in range(32): a(f'v_lshl_or_b32 v{16+r}, v{65+2*r}, 16, v{64+2*r}')
    a(f'''
    s_mov_b64 s[12:13], s[16:17]
    s_lshr_b32 s26, s23, 1
    s_mul_i32 s26, s26, 458752
    s_and_b32 s27, s23, 1
    s_mul_i32 s27, s27, 14336
    s_add_u32 s26, s26, s27
    s_mul_i32 s27, s22, 28672
    s_add_u32 s26, s26, s27
    s_add_u32 s26, s26, {off['WB']}
    s_mov_b32 s28, 1.0
    {BD}:
    v_lshlrev_b32 v9, 4, v2
    v_add_u32 v9, s26, v9
    ''')
    def loads(it):
        b = 64 + 64*(it & 1)
        for tau in range(2):
            for ks in range(8):
                r = b + 32*tau + 4*ks
                a(f'global_load_dwordx4 v[{r}:{r+3}], v{5+tau}, s[12:13] offset:{64*ks}')
        sadd(a, 12, 262144)
    loads(0)
    for it in range(14):
        if it < 13: loads(it + 1)
        b = 64 + 64*(it & 1)
        a('s_waitcnt vmcnt(%d)' % (16 if it < 13 else 0))
        for ks in range(8):
            for tau in range(2):
                r = b + 32*tau + 4*ks; d = 48 + 4*tau
                c = '0' if ks == 0 else f'v[{d}:{d+3}]'
                a(f'v_mfma_f32_16x16x32_bf16 v[{d}:{d+3}], v[{r}:{r+3}], v[{16+4*ks}:{19+4*ks}], {c}')
        for r in range(8): a(f'v_mul_f32 v{56+r}, s28, v{48+r}')
        o = 10 + 0
        for r in range(4): a(f'v_cvt_pk_bf16_f32 v{192+4*(it&1)+r}, v{56+2*r}, v{57+2*r}')
        a(f'global_store_dwordx4 v9, v[{192+4*(it&1)}:{195+4*(it&1)}], s[8:9] offset:{(it&3)*1024}')
        if it % 4 == 3: a('v_add_u32 v9, 4096, v9')
    a(f's_branch {END}')

def xp_task(a, END):
    a(f'''
    s_lshl_b32 s12, s2, 2
    s_add_u32 s12, s12, s10
    s_mul_i32 s13, s12, 14336
    v_and_b32 v3, 15, v2
    v_lshrrev_b32 v4, 4, v2
    v_mul_u32_u24 v5, 896, v3
    v_lshrrev_b32 v6, 1, v4
    v_lshl_add_u32 v5, v6, 5, v5
    v_and_b32 v6, 1, v4
    v_lshl_add_u32 v5, v6, 3, v5
    v_add_u32 v5, s13, v5
    v_lshlrev_b32 v6, 4, v2
    v_add_u32 v6, s13, v6
    v_add_u32 v6, {off['XP']}, v6
    ''')
    for f in range(14):
        r = 16 + 4*f
        a(f'global_load_dwordx2 v[{r}:{r+1}], v5, s[4:5] offset:{64*f}\nglobal_load_dwordx2 v[{r+2}:{r+3}], v5, s[4:5] offset:{64*f+16}')
    for f in range(14):
        r = 16 + 4*f
        a(f's_waitcnt vmcnt({26-2*f})\nv_swap_b32 v{r+1}, v{r+2}')
        a(f'global_store_dwordx4 v6, v[{r}:{r+3}], s[8:9] offset:{(f&3)*1024}')
        if f % 4 == 3: a('v_add_u32 v6, 4096, v6')
    a(f's_branch {END}')

def xk_task(a, END):
    a(f'''
    s_mul_i32 s12, s2, 28672
    s_mul_i32 s13, s10, 224
    s_add_u32 s13, s13, s12
    v_and_b32 v3, 15, v2
    v_lshrrev_b32 v4, 4, v2
    v_mul_u32_u24 v5, 896, v3
    v_add_u32 v5, s13, v5
    v_lshl_add_u32 v6, v4, 4, v5
    v_lshl_add_u32 v7, v4, 3, v5
    v_add_u32 v8, 14336, v6
    v_add_u32 v9, 14336, v7
    s_mul_i32 s13, s10, 7168
    s_add_u32 s13, s13, s12
    s_add_u32 s13, s13, {off['XK'] + 4096}
    v_lshlrev_b32 v10, 4, v2
    v_add_u32 v10, s13, v10
    ''')
    for jt in range(2):
        for q in range(3): a(f'global_load_dwordx4 v[{16+12*jt+4*q}:{19+12*jt+4*q}], v{6+2*jt}, s[4:5] offset:{64*q}')
        a(f'global_load_dwordx2 v[{40+2*jt}:{41+2*jt}], v{7+2*jt}, s[4:5] offset:192')
    a('s_waitcnt vmcnt(0)')
    for f in range(7): a(f'global_store_dwordx4 v10, v[{16+4*f}:{19+4*f}], s[8:9] offset:{1024*f-4096}')
    a(f's_branch {END}')

def wq_task(a, END):
    a(f'''
    s_load_dwordx2 s[14:15], s[0:1], 8
    s_lshl_b32 s12, s2, 2
    s_add_u32 s12, s12, s10
    s_lshr_b32 s13, s12, 5
    s_mul_i32 s13, s13, 448
    s_bfe_u32 s16, s12, 0x40001
    s_mul_i32 s16, s16, 28
    s_add_u32 s13, s13, s16
    s_and_b32 s16, s12, 1
    s_lshl_b32 s16, s16, 4
    s_add_u32 s13, s13, s16           ; col0
    v_and_b32 v3, 15, v2
    v_lshrrev_b32 v4, 4, v2
    v_lshrrev_b32 v6, 1, v4
    v_lshlrev_b32 v5, 4, v6
    v_and_b32 v6, 1, v4
    v_lshl_add_u32 v5, v6, 2, v5
    v_mul_u32_u24 v5, 2688, v5
    v_add_u32 v6, s13, v3
    v_lshl_add_u32 v5, v6, 1, v5
    v_add_u32 v7, {8*2688}, v5
    s_mul_i32 s13, s12, 14336
    v_lshlrev_b32 v6, 4, v2
    v_add_u32 v6, s13, v6
    v_add_u32 v6, {off['WQ']}, v6
    v_add_u32 v8, s16, v3
    ''')
    for r in range(80, 192): a(f'v_mov_b32 v{r}, 0')
    a('s_waitcnt lgkmcnt(0)\nv_cmp_gt_u32 vcc, 28, v8\ns_mov_b64 exec, vcc')
    a('v_add_u32 v5, 2688, v5\nv_add_u32 v7, 2688, v7')
    for f in range(14):
        r = 16 + 4*f
        for e in range(8):
            ko = [0, 1, 8, 9, 2, 3, 10, 11][e]
            v = 'v5' if ko < 8 else 'v7'; k4 = ko & 3
            if k4 < 3: a(f'global_load_ushort v{80+8*f+e}, {v}, s[14:15] offset:{(k4-1)*2688}')
        a('v_add_u32 v5, 5376, v5\nv_add_u32 v7, 5376, v7')
        a(f'global_load_ushort v{80+8*f+5}, v5, s[14:15]\nglobal_load_ushort v{80+8*f+7}, v7, s[14:15]')
        a(f'v_add_u32 v5, {32*2688-5376}, v5\nv_add_u32 v7, {32*2688-5376}, v7')
        if f % 4 == 3: a('s_waitcnt vmcnt(16)')
    a('s_mov_b64 exec, -1\ns_waitcnt vmcnt(0)')
    for r in range(56): a(f'v_lshl_or_b32 v{16+r}, v{81+2*r}, 16, v{80+2*r}')
    for f in range(14):
        r = 16 + 4*f
        a(f'global_store_dwordx4 v6, v[{r}:{r+3}], s[8:9] offset:{(f&3)*1024}')
        if f % 4 == 3: a('v_add_u32 v6, 4096, v6')
    a(f's_branch {END}')

def woa_task(a, END):
    a(f'''
    s_load_dwordx2 s[14:15], s[0:1], 16
    s_lshl_b32 s12, s2, 2
    s_add_u32 s12, s12, s10
    v_and_b32 v3, 15, v2
    v_lshrrev_b32 v4, 4, v2
    v_mul_u32_u24 v5, 3584, v4
    s_lshl_b32 s13, s12, 5
    v_lshl_add_u32 v5, v3, 1, v5
    v_add_u32 v5, s13, v5
    v_add_u32 v7, {16*896}, v5
    s_lshl_b32 s13, s12, 14
    v_lshlrev_b32 v6, 4, v2
    v_add_u32 v6, s13, v6
    v_add_u32 v6, {off['WOA']}, v6
    ''')
    for r in range(80, 208): a(f'v_mov_b32 v{r}, 0')
    a('s_waitcnt lgkmcnt(0)\ns_mov_b32 s16, -1\ns_mov_b32 s17, 0xffff')
    for h in range(16):
        r = 16 + 4*h
        for e in range(4): a(f'global_load_ushort v{80+8*h+e}, v5, s[14:15] offset:{e*896}')
        a('s_mov_b64 exec, s[16:17]')
        for e in range(4): a(f'global_load_ushort v{84+8*h+e}, v7, s[14:15] offset:{e*896}')
        a('s_mov_b64 exec, -1')
        if h < 15: a(f'v_add_u32 v5, {28*896}, v5\nv_add_u32 v7, {28*896}, v7')
        if h % 4 == 3: a('s_waitcnt vmcnt(16)')
    a('s_waitcnt vmcnt(0)')
    for r in range(64): a(f'v_lshl_or_b32 v{16+r}, v{81+2*r}, 16, v{80+2*r}')
    for h in range(16):
        r = 16 + 4*h
        a(f'global_store_dwordx4 v6, v[{r}:{r+3}], s[8:9] offset:{(h&3)*1024}')
        if h % 4 == 3: a('v_add_u32 v6, 4096, v6')
    a(f's_branch {END}')

def fill_task(a, END):
    a(f'''
    s_lshl_b32 s12, s2, 2
    s_add_u32 s12, s12, s10
    s_lshl_b32 s13, s12, 14
    s_mov_b32 s14, {off['MEM'] + 7168}
    s_cmp_ge_u32 s12, 28
    s_cselect_b32 s14, {off['PB'] - 28*16384}, s14
    s_cmp_ge_u32 s12, 68
    s_cselect_b32 s14, {off['MEM2'] + 7168 - 68*16384}, s14
    s_add_u32 s13, s13, s14
    v_lshlrev_b32 v6, 4, v2
    v_add_u32 v6, s13, v6
    v_mov_b32 v8, -1
    v_mov_b32 v9, -1
    v_mov_b32 v10, -1
    v_mov_b32 v11, -1
    ''')
    for f in range(16):
        a(f'global_store_dwordx4 v6, v[8:11], s[8:9] offset:{(f&3)*1024}')
        if f % 4 == 3: a('v_add_u32 v6, 4096, v6')
    a(f's_branch {END}')

def gate_task(a, END):
    a(f'''
    s_load_dwordx2 s[14:15], s[0:1], 80
    s_lshl_b32 s12, s2, 2
    s_add_u32 s12, s12, s10
    s_mul_i32 s13, s12, 14336
    v_and_b32 v3, 15, v2
    v_lshrrev_b32 v4, 4, v2
    v_mul_u32_u24 v5, 896, v3
    v_mul_u32_u24 v6, 224, v4
    v_add_u32 v5, v5, v6
    v_add_u32 v5, s13, v5
    v_mov_b32 v8, 0
    v_mov_b32 v9, 0
    s_waitcnt lgkmcnt(0)
    ''')
    for f in range(14):
        a(f'global_load_dwordx4 v[{16+4*f}:{19+4*f}], v5, s[4:5] offset:{16*f}\nglobal_load_dwordx4 v[{80+4*f}:{83+4*f}], v6, s[14:15] offset:{16*f}')
    a('s_waitcnt vmcnt(0)')
    for r in range(56):
        a(f'''v_lshlrev_b32 v10, 16, v{16+r}
        v_lshlrev_b32 v11, 16, v{80+r}
        v_and_b32 v12, 0xffff0000, v{16+r}
        v_and_b32 v13, 0xffff0000, v{80+r}
        v_fmac_f32 v8, v10, v11
        v_fmac_f32 v9, v12, v13''')
    a(f'''
    v_add_f32 v8, v8, v9
    v_mov_b32 v9, v8
    v_permlane16_swap_b32 v8, v9
    v_add_f32 v8, v8, v9
    v_mov_b32 v9, v8
    v_permlane32_swap_b32 v8, v9
    v_add_f32 v8, v8, v9
    v_mul_f32 v8, 0x{f2u(-LOG2E):08x}, v8
    v_exp_f32 v8, v8
    v_add_f32 v8, 1.0, v8
    v_rcp_f32 v8, v8
    s_lshl_b32 s13, s12, 6
    s_add_u32 s13, s13, {off['G']}
    v_lshlrev_b32 v5, 2, v3
    v_add_u32 v5, s13, v5
    s_mov_b64 exec, 0xffff
    global_store_dword v5, v8, s[8:9]
    s_branch {END}
    ''')

def mem0_task(a, END):
    a(f'''
    s_load_dwordx2 s[14:15], s[0:1], 32
    v_and_b32 v3, 7, v0
    v_lshrrev_b32 v4, 3, v0
    v_mul_u32_u24 v5, 896, v3
    v_lshl_add_u32 v5, v4, 4, v5
    v_lshlrev_b32 v6, 4, v0
    v_add_u32 v6, {off['MEM']}, v6
    s_waitcnt lgkmcnt(0)
    global_load_dwordx4 v[8:11], v5, s[14:15]
    v_cmp_gt_u32 vcc, 192, v0
    s_waitcnt vmcnt(0)
    ''')
    for r in range(8, 12): a(f'v_min_u32 v{r}, -2, v{r}')
    a(f'''global_store_dwordx4 v6, v[8:11], s[8:9]
    v_add_u32 v7, {off['MEM2'] - off['MEM']}, v6
    global_store_dwordx4 v7, v[8:11], s[8:9]
    v_add_u32 v20, {off['FL'] - off['MEM']}, v6
    v_mov_b32 v16, 0
    v_mov_b32 v17, 0
    v_mov_b32 v18, 0
    v_mov_b32 v19, 0
    global_store_dwordx4 v20, v[16:19], s[8:9]
    v_add_u32 v20, 4096, v20
    global_store_dwordx4 v20, v[16:19], s[8:9]
    v_add_u32 v20, 4096, v20
    global_store_dwordx4 v20, v[16:19], s[8:9]
    v_add_u32 v20, 4096, v20
    global_store_dwordx4 v20, v[16:19], s[8:9]
    v_add_u32 v20, 4096, v20
    global_store_dwordx4 v20, v[16:19], s[8:9]
    v_add_u32 v20, 4096, v20
    global_store_dwordx4 v20, v[16:19], s[8:9]
    v_add_u32 v20, 4096, v20
    global_store_dwordx4 v20, v[16:19], s[8:9]
    v_add_u32 v7, 4096, v7
    s_mov_b64 exec, vcc
    global_load_dwordx4 v[12:15], v5, s[14:15] offset:512
    v_add_u32 v6, 4096, v6
    s_waitcnt vmcnt(0)''')
    for r in range(12, 16): a(f'v_min_u32 v{r}, -2, v{r}')
    a(f'global_store_dwordx4 v6, v[12:15], s[8:9]\nglobal_store_dwordx4 v7, v[12:15], s[8:9]\ns_branch {END}')

def gen_prep(a, name):
    kernel_begin(a, name)
    END = a.lab('K1END')
    a('''
    s_load_dwordx2 s[4:5], s[0:1], 0
    s_load_dwordx2 s[8:9], s[0:1], 104
    v_lshrrev_b32 v1, 6, v0
    v_and_b32 v2, 63, v0
    v_readfirstlane_b32 s10, v1
    s_waitcnt lgkmcnt(0)
    ''')
    for n, fn in ((N_FOLD, fold_task), (N_XP, xp_task), (N_WQ, wq_task), (N_WOA, woa_task), (N_FILL, fill_task), (N_GATE, gate_task), (N_XK, xk_task), (1, mem0_task)):
        NX = a.lab('K1N')
        a(f's_cmp_ge_u32 s2, {n}\ns_cbranch_scc1 {NX}')
        fn(a, END)
        a(f'{NX}:\ns_sub_u32 s2, s2, {n}')
    a(f'{END}:\ns_endpgm')
```

```python
from asmlib import *
from layout import off
from prep import f2u
from atta import colreduce, NEG
GRID = 128; LDS = 24576; NV = 512
def xrow_task(a, END):
    BIAS, SC, FB = 16, 28, 64
    a(f'''
    v_lshlrev_b32 v3, 4, v2
    v_and_b32 v4, 15, v2
    v_lshrrev_b32 v5, 4, v2
    s_lshr_b32 s12, s40, 1             ; seg
    s_mul_i32 s13, s40, 229376
    s_mul_i32 s14, s10, {4*14336}
    s_add_u32 s13, s13, s14
    s_add_u32 s13, s13, {off['F']}
    v_add_u32 v6, s13, v3              ; F addr
    s_mul_i32 s13, s12, 28672
    v_mul_u32_u24 v7, 896, v4
    v_lshl_add_u32 v7, v5, 3, v7
    v_add_u32 v7, s13, v7
    v_add_u32 v8, 14336, v7            ; tile 1
    s_mul_i32 s13, s12, 7168
    s_add_u32 s13, s13, {off['MEM'] + 3584}
    v_and_b32 v9, 7, v2
    v_lshlrev_b32 v9, 4, v9
    v_lshrrev_b32 v10, 1, v5
    v_lshl_add_u32 v9, v10, 7, v9
    v_and_b32 v10, 1, v5
    v_lshl_add_u32 v9, v10, 3, v9
    v_add_u32 v9, s13, v9
    ''')
    def f_loads(hh):
        b = FB + 56*(hh & 1)
        for kq in range(14):
            a(f'global_load_dwordx4 v[{b+4*kq}:{b+4*kq+3}], v6, s[8:9] offset:{(kq&3)*1024}')
            if kq % 4 == 3: a('v_add_u32 v6, 4096, v6')
        a('v_add_u32 v6, 2048, v6')
    for kq in range(14):
        r = 4*kq
        a(f'global_load_dwordx2 a[{r}:{r+1}], v9, s[8:9] offset:{512*kq-3584}\nglobal_load_dwordx2 a[{r+2}:{r+3}], v9, s[8:9] offset:{512*kq-3584+256}')
    for jt in range(2):
        for kq in range(14):
            r = 56*(jt + 1) + 4*kq
            a(f'global_load_dwordx2 a[{r}:{r+1}], v{7+jt}, s[4:5] offset:{64*kq}\nglobal_load_dwordx2 a[{r+2}:{r+3}], v{7+jt}, s[4:5] offset:{64*kq+32}')
        a('s_waitcnt vmcnt(28)')
    f_loads(0)
    a(f'''
    s_and_b32 s13, s40, 1
    s_lshl_b32 s13, s13, 4
    v_add_u32 v10, s13, v4
    v_lshlrev_b32 v11, 2, v5
    v_sub_u32 v10, v10, v11            ; i - 4g (signed)
    v_mov_b32 v14, 0x{NEG:08x}
    v_cmp_gt_u32 vcc, 2, v5
    v_cndmask_b32 v12, 0, 1.0, vcc
    s_lshl_b32 s13, s10, 12
    v_add_u32 v13, s13, v3
    s_lshl_b32 s13, s10, 11
    s_add_u32 s13, s13, 16384
    v_add_u32 v15, s13, v3
    ''')
    for k in range(8):
        j = 16*(k >> 2) + (k & 3)
        a(f'v_cmp_le_i32 vcc, {j}, v10\nv_cndmask_b32 v{BIAS+k}, v14, 0, vcc')
    for hh in range(4):
        if hh < 3: f_loads(hh + 1)
        a(f's_waitcnt vmcnt({14 if hh < 3 else 0})')
        b = FB + 56*(hh & 1)
        for kq in range(14):
            for jt in range(3):
                d = SC + 4*jt; r = 56*jt + 4*kq
                c = (f'v[{d}:{d+3}]' if kq else ('0' if jt == 0 else f'v[{BIAS+4*(jt-1)}:{BIAS+4*(jt-1)+3}]'))
                a(f'v_mfma_f32_16x16x32_bf16 v[{d}:{d+3}], a[{r}:{r+3}], v[{b+4*kq}:{b+4*kq+3}], {c}')
        a(f'''v_max3_f32 v40, v{SC}, v{SC+1}, v{SC+2}
        v_max3_f32 v41, v{SC+3}, v{SC+4}, v{SC+5}
        v_max3_f32 v40, v40, v{SC+6}, v{SC+7}
        v_max3_f32 v41, v41, v{SC+8}, v{SC+9}
        v_max3_f32 v40, v40, v{SC+10}, v{SC+11}
        v_max_f32 v40, v40, v41''')
        colreduce(a, 'v_max_f32', 40, 41)
        a('v_mov_b32 v41, v40')
        for r in range(0, 12, 2): a(f'v_pk_add_f32 v[{SC+r}:{SC+r+1}], v[{SC+r}:{SC+r+1}], v[40:41] neg_lo:[0,1] neg_hi:[0,1]')
        for r in range(12): a(f'v_exp_f32 v{SC+r}, v{SC+r}')
        a(f'''v_pk_add_f32 v[42:43], v[{SC}:{SC+1}], v[{SC+2}:{SC+3}]
        v_pk_add_f32 v[44:45], v[{SC+4}:{SC+5}], v[{SC+6}:{SC+7}]
        v_pk_add_f32 v[46:47], v[{SC+8}:{SC+9}], v[{SC+10}:{SC+11}]
        v_add_f32 v42, v42, v43
        v_pk_add_f32 v[44:45], v[44:45], v[46:47]
        v_add_f32 v44, v44, v45
        v_fmac_f32 v44, v42, v12''')
        colreduce(a, 'v_add_f32', 44, 45)
        a('v_rcp_f32 v44, v44\nv_mov_b32 v45, v44')
        for r in range(0, 12, 2): a(f'v_pk_mul_f32 v[{SC+r}:{SC+r+1}], v[{SC+r}:{SC+r+1}], v[44:45]')
        for r in range(6): a(f'v_cvt_pk_bf16_f32 v{48+r}, v{SC+2*r}, v{SC+2*r+1}')
        a(f'ds_write_b64 v15, v[48:49] offset:{1024*(hh>>1)+8*(hh&1)}\nds_write_b128 v13, v[50:53] offset:{1024*hh}')
    a(f'''
    s_mul_i32 s13, s12, 458752
    s_add_u32 s13, s13, {off['U']}
    v_add_u32 v6, s13, v3
    s_mul_i32 s13, s12, 229376
    s_add_u32 s13, s13, {off['ZB']}
    v_add_u32 v7, s13, v3
    s_mul_i32 s14, s40, 28672
    s_mul_i32 s15, s10, 7168
    s_add_u32 s14, s14, s15
    s_add_u32 s14, s14, {off['OA']}
    v_add_u32 v11, s14, v3             ; OA
    s_lshl_b32 s14, s40, 6
    s_add_u32 s14, s14, {off['G']}
    v_lshlrev_b32 v12, 2, v4
    v_add_u32 v12, s14, v12
    global_load_dword v14, v12, s[8:9]
    s_mul_i32 s14, s40, 14336
    s_mul_i32 s15, s10, 224
    s_add_u32 s14, s14, s15
    v_mul_u32_u24 v12, 896, v4
    v_lshl_add_u32 v12, v5, 3, v12
    v_add_u32 v12, s14, v12
    s_mul_i32 s16, s10, 7
    ''')
    def uz_loads(t):
        b = 100*(t & 1)
        a(f'''s_add_u32 s13, s16, {t}
        s_lshr_b32 s14, s13, 1
        s_and_b32 s13, s13, 1
        s_lshl_b32 s13, s13, 10
        s_lshl_b32 s15, s14, 15
        s_add_u32 s15, s15, s13
        v_add_u32 v8, s15, v6
        s_lshl_b32 s15, s14, 14
        s_add_u32 s15, s15, s13
        v_add_u32 v9, s15, v7''')
        for h in range(16):
            a(f'global_load_dwordx4 a[{b+4*h}:{b+4*h+3}], v8, s[8:9] offset:{(h&1)*2048}')
            if h & 1: a('v_add_u32 v8, 4096, v8')
        for p in range(8):
            a(f'global_load_dwordx4 a[{b+64+4*p}:{b+67+4*p}], v9, s[8:9] offset:{(p&1)*2048}')
            if p & 1: a('v_add_u32 v9, 4096, v9')
        a(f'global_load_dwordx4 a[{b+96}:{b+99}], v11, s[8:9]\nv_add_u32 v11, 1024, v11')
    uz_loads(0)
    a('s_waitcnt lgkmcnt(0)\ns_barrier')
    for f in range(24): a(f'ds_read_b128 v[{64+4*f}:{67+4*f}], v3 offset:{1024*f}')
    for t in range(7):
        if t < 6: uz_loads(t + 1)
        a(f's_waitcnt vmcnt({25 if t < 6 else 0}) lgkmcnt(0)')
        if t == 0: a('v_sub_f32 v15, 1.0, v14')
        b = 100*(t & 1); o = 16 + 8*(t & 1)
        for f in range(24):
            oo = o + 4*(f & 1)
            c = '0' if f < 2 else f'v[{oo}:{oo+3}]'
            a(f'v_mfma_f32_16x16x32_bf16 v[{oo}:{oo+3}], a[{b+4*f}:{b+4*f+3}], v[{64+4*f}:{67+4*f}], {c}')
        for r in range(4): a(f'v_accvgpr_read_b32 v{40+r}, a{b+96+r}')
        for r in range(4): a(f'v_mul_f32 v{40+r}, v{40+r}, v14')
        a(f'v_pk_add_f32 v[{o}:{o+1}], v[{o}:{o+1}], v[{o+4}:{o+5}]\nv_pk_add_f32 v[{o+2}:{o+3}], v[{o+2}:{o+3}], v[{o+6}:{o+7}]')
        for r in range(4): a(f'v_fmac_f32 v{40+r}, v{o+r}, v15')
        k = 44 + 2*(t & 1)
        a(f'v_cvt_pk_bf16_f32 v{k}, v40, v41\nv_cvt_pk_bf16_f32 v{k+1}, v42, v43')
        a(f'global_store_dwordx2 v12, v[{k}:{k+1}], s[30:31] offset:{32*t}')
    a(f's_waitcnt vmcnt(0)\ns_barrier\ns_branch {END}')
def gen(a, name):
    kernel_begin(a, name)
    END = a.lab('K4END')
    a(f'''
    s_load_dwordx2 s[4:5], s[0:1], 0
    s_load_dwordx2 s[8:9], s[0:1], 104
    s_load_dwordx2 s[30:31], s[0:1], 88
    v_lshrrev_b32 v1, 6, v0
    v_and_b32 v2, 63, v0
    v_readfirstlane_b32 s10, v1
    s_cmp_ge_u32 s2, {GRID}
    s_cbranch_scc1 {END}
    s_mov_b32 s40, s2
    s_waitcnt lgkmcnt(0)
    ''')
    xrow_task(a, END)
    a(f'{END}:\ns_endpgm')
```

```python
from asmlib import *
from layout import off
from prep import f2u
from atta import colreduce, NEG
XPROF = [False]
def xstamp(a, k):
    if not XPROF[0]: return
    a(f'''s_memrealtime s[50:51]
    s_lshl_b32 s52, s40, 5
    s_add_u32 s52, s52, {off['XK'] + 64*28672 + 4*k}
    v_mov_b32 v0, s52
    s_waitcnt lgkmcnt(0)
    v_mov_b32 v1, s50
    global_store_dword v0, v1, s[8:9]''')
def xrow_task(a, END):
    SC, MK, UU, BIAS = 16, 64, 120, 232
    OAC, OA, T = 64, 100, 108
    def zreg(t, p):
        i = 2*t + p
        return f'a[{224+4*i}:{227+4*i}]' if i < 8 else f'v[{232+4*(i-8)}:{235+4*(i-8)}]'
    P1, D1, P2, D2, SK, LS, W3, P3, D3, P4, D4 = [a.lab(x) for x in ('XW', 'XWD', 'XP', 'XPD', 'XSK', 'XLS', 'XW3', 'XP3', 'XD3', 'XP4', 'XD4')]
    P5, D5 = a.lab('XP5'), a.lab('XD5')
    xstamp(a, 0)
    a(f'''
    v_lshlrev_b32 v3, 4, v2
    v_and_b32 v4, 15, v2
    v_lshrrev_b32 v5, 4, v2
    s_lshr_b32 s41, s40, 2             ; tt
    s_and_b32 s42, s40, 3              ; q
    s_lshr_b32 s12, s40, 3             ; seg
    s_lshr_b32 s13, s40, 4
    s_lshl_b32 s13, s13, 8
    s_add_u32 s13, s13, {off['FL']}
    v_lshl_add_u32 v9, v2, 2, s13
    s_lshl_b32 s14, s40, 2
    s_add_u32 s14, s14, {off['FL'] + 8192}
    v_mov_b32 v10, s14
    v_cmp_gt_u32 vcc, 56, v2
    v_cndmask_b32 v9, v10, v9, vcc
    s_mul_i32 s13, s12, 28672
    v_mul_u32_u24 v7, 896, v4
    v_lshl_add_u32 v7, v5, 3, v7
    v_add_u32 v7, s13, v7
    v_add_u32 v8, 14336, v7            ; tile 1
    ''')
    for jt in range(2):
        for kq in range(14):
            r = UU + 56*jt + 4*kq
            a(f'global_load_dwordx2 v[{r}:{r+1}], v{7+jt}, s[4:5] offset:{64*kq}\nglobal_load_dwordx2 v[{r+2}:{r+3}], v{7+jt}, s[4:5] offset:{64*kq+32}')
    a(f'''
    s_mov_b32 s14, 4096
    {P1}:
    global_load_dword v10, v9, s[8:9] sc0 sc1
    s_waitcnt vmcnt(0)
    v_cmp_gt_u32 vcc, 4, v10
    s_cbranch_vccz {D1}
    s_sleep 16
    s_sub_u32 s14, s14, 1
    s_cbranch_scc0 {P1}
    {D1}:
    s_mul_i32 s13, s41, 229376
    s_mul_i32 s14, s10, {4*14336}
    s_add_u32 s13, s13, s14
    s_add_u32 s13, s13, {off['F']}
    v_add_u32 v6, s13, v3              ; F addr
    ''')
    xstamp(a, 1)
    a('s_waitcnt vmcnt(0)')
    for f in range(56):
        a(f'global_load_dwordx4 a[{4*f}:{4*f+3}], v6, s[8:9] offset:{(f&3)*1024}')
        if f % 4 == 3: a('v_add_u32 v6, 4096, v6')
    a(f'''
    s_and_b32 s13, s41, 1
    s_lshl_b32 s13, s13, 4
    v_add_u32 v10, s13, v4
    v_lshlrev_b32 v11, 2, v5
    v_sub_u32 v10, v10, v11            ; i - 4g (signed)
    v_mov_b32 v14, 0x{NEG:08x}
    v_cmp_gt_u32 vcc, 2, v5
    v_cndmask_b32 v12, 0, 1.0, vcc
    ''')
    for k in range(8):
        j = 16*(k >> 2) + (k & 3)
        a(f'v_cmp_le_i32 vcc, {j}, v10\nv_cndmask_b32 v{BIAS+k}, v14, 0, vcc')
    for hp in range(2):
        a(f's_waitcnt vmcnt({28 if hp == 0 else 0})')
        for kq in range(14):
            for hh in (2*hp, 2*hp + 1):
                for jt in range(2):
                    d = SC + 12*hh + 4 + 4*jt; r = UU + 56*jt + 4*kq; f = 56*hh + 4*kq
                    c = f'v[{d}:{d+3}]' if kq else f'v[{BIAS+4*jt}:{BIAS+4*jt+3}]'
                    a(f'v_mfma_f32_16x16x32_bf16 v[{d}:{d+3}], v[{r}:{r+3}], a[{f}:{f+3}], {c}')
    a(f'''
    s_mul_i32 s13, s12, 458752
    s_lshl_b32 s14, s10, 13
    s_add_u32 s13, s13, s14
    s_add_u32 s13, s13, {off['U'] + 4096}
    v_add_u32 v6, s13, v3
    s_mul_i32 s13, s12, 229376
    s_lshl_b32 s14, s10, 12
    s_add_u32 s13, s13, s14
    s_add_u32 s13, s13, {off['ZB']}
    v_add_u32 v7, s13, v3
    s_mul_i32 s16, s42, 7
    ''')
    for t in range(7):
        a(f'''s_add_u32 s13, s16, {t}
        s_lshr_b32 s14, s13, 1
        s_and_b32 s13, s13, 1
        s_lshl_b32 s13, s13, 10
        s_lshl_b32 s15, s14, 15
        s_add_u32 s15, s15, s13
        v_add_u32 v8, s15, v6
        s_lshl_b32 s15, s14, 14
        s_add_u32 s{60+t}, s15, s13''')
        for hl in range(4):
            r = UU + 16*t + 4*hl
            a(f'global_load_dwordx4 v[{r}:{r+3}], v8, s[8:9] offset:{2048*hl-4096}')
    a(f'''
    s_mul_i32 s13, s12, 7168
    s_add_u32 s13, s13, {off['MEM2'] + 3584}
    v_and_b32 v9, 7, v2
    v_lshlrev_b32 v9, 4, v9
    v_lshrrev_b32 v10, 1, v5
    v_lshl_add_u32 v9, v10, 7, v9
    v_and_b32 v10, 1, v5
    v_lshl_add_u32 v9, v10, 3, v9
    v_add_u32 v9, s13, v9
    s_mul_i32 s14, s41, 28672
    s_mul_i32 s15, s42, 7168
    s_add_u32 s14, s14, s15
    s_lshl_b32 s15, s10, 10
    s_add_u32 s14, s14, s15
    s_add_u32 s14, s14, {off['OA']}
    v_add_u32 v11, s14, v3
    s_cmp_eq_u32 s10, 3
    s_cselect_b32 s14, 0, 4096
    v_add_u32 v13, s14, v11
    s_lshl_b32 s14, s41, 6
    s_add_u32 s14, s14, {off['G']}
    v_lshlrev_b32 v10, 2, v4
    v_add_u32 v10, s14, v10
    global_load_dword v14, v10, s[8:9]
    s_cmp_lg_u32 s10, 0
    s_cbranch_scc1 {SK}
    s_max_u32 s13, s12, 1
    s_mul_i32 s13, s13, 7168
    s_add_u32 s13, s13, {off['MEM2'] - 16}
    v_mov_b32 v10, s13
    s_mov_b32 s14, 8192
    s_mov_b64 exec, 1
    {P2}:
    global_load_dword v15, v10, s[8:9] sc0 sc1
    s_waitcnt vmcnt(0)
    v_cmp_eq_u32 vcc, -1, v15
    s_cbranch_vccz {D2}
    s_sleep 24
    s_sub_u32 s14, s14, 1
    s_cbranch_scc0 {P2}
    {D2}:
    s_mov_b64 exec, 0xff
    s_mul_i32 s13, s12, 7168
    s_add_u32 s13, s13, {off['MEM2'] + 880}
    v_and_b32 v10, 7, v2
    v_mul_u32_u24 v10, 896, v10
    v_add_u32 v10, s13, v10
    s_mov_b64 exec, 0xff
    {P5}:
    global_load_dword v15, v10, s[8:9] sc0 sc1
    s_waitcnt vmcnt(0)
    v_cmp_eq_u32 vcc, -1, v15
    s_cbranch_vccz {D5}
    s_sleep 4
    s_sub_u32 s14, s14, 1
    s_cbranch_scc0 {P5}
    {D5}:
    s_mov_b64 exec, -1
    {SK}:
    s_waitcnt vmcnt(0)
    s_barrier
    s_mov_b32 s14, 4096
    ''')
    xstamp(a, 2)
    a(f's_waitcnt vmcnt(0)\n{P3}:')
    for kq in range(14):
        r = MK + 4*kq
        a(f'global_load_dwordx2 v[{r}:{r+1}], v9, s[8:9] offset:{512*kq-3584} sc0 sc1\nglobal_load_dwordx2 v[{r+2}:{r+3}], v9, s[8:9] offset:{512*kq-3584+256} sc0 sc1')
    a(f's_waitcnt vmcnt(14)\nv_max_u32 v8, v{MK}, v{MK+1}\nv_max_u32 v10, v{MK+2}, v{MK+3}')
    for r in range(4, 56, 4):
        if r == 28: a('s_waitcnt vmcnt(0)')
        a(f'v_max3_u32 v8, v8, v{MK+r}, v{MK+r+1}\nv_max3_u32 v10, v10, v{MK+r+2}, v{MK+r+3}')
    a(f'''
    v_max_u32 v8, v8, v10
    v_cmp_eq_u32 vcc, -1, v8
    s_cbranch_vccz {D3}
    s_sleep 8
    s_sub_u32 s14, s14, 1
    s_cbranch_scc0 {P3}
    {D3}:
    ''')
    xstamp(a, 3)
    for kq in range(14):
        for hh in range(4):
            d = SC + 12*hh; r = MK + 4*kq; f = 56*hh + 4*kq
            c = f'v[{d}:{d+3}]' if kq else '0'
            a(f'v_mfma_f32_16x16x32_bf16 v[{d}:{d+3}], v[{r}:{r+3}], a[{f}:{f+3}], {c}')
    a(f'global_load_dwordx4 v[{OA}:{OA+3}], v11, s[8:9]\nglobal_load_dwordx4 v[{OA+4}:{OA+7}], v13, s[8:9]')
    seqs = []
    for hh in range(4):
        S = SC + 12*hh; m = 92 + 2*hh; t = T + 2*hh; u = 8 if hh < 2 else 10
        L = [f'v_max3_f32 v{m}, v{S}, v{S+1}, v{S+2}', f'v_max3_f32 v{m+1}, v{S+3}, v{S+4}, v{S+5}',
             f'v_max3_f32 v{m}, v{m}, v{S+6}, v{S+7}', f'v_max3_f32 v{m+1}, v{m+1}, v{S+8}, v{S+9}',
             f'v_max3_f32 v{m}, v{m}, v{S+10}, v{S+11}', f'v_max_f32 v{m}, v{m}, v{m+1}']
        def cr(op, r, x): return [f'v_mov_b32 v{x}, v{r}', f'v_permlane16_swap_b32 v{r}, v{x}', f'{op} v{r}, v{r}, v{x}',
                                  f'v_mov_b32 v{x}, v{r}', f'v_permlane32_swap_b32 v{r}, v{x}', f'{op} v{r}, v{r}, v{x}']
        L += cr('v_max_f32', m, m + 1) + [f'v_mov_b32 v{m+1}, v{m}']
        for r in range(0, 12, 2): L.append(f'v_pk_add_f32 v[{S+r}:{S+r+1}], v[{S+r}:{S+r+1}], v[{m}:{m+1}] neg_lo:[0,1] neg_hi:[0,1]')
        for r in range(12): L.append(f'v_exp_f32 v{S+r}, v{S+r}')
        L += [f'v_pk_add_f32 v[{m}:{m+1}], v[{S}:{S+1}], v[{S+2}:{S+3}]', f'v_pk_add_f32 v[{t}:{t+1}], v[{S+4}:{S+5}], v[{S+6}:{S+7}]',
              f'v_add_f32 v{m}, v{m}, v{m+1}', f'v_pk_add_f32 v[{t}:{t+1}], v[{t}:{t+1}], v[{S+8}:{S+9}]',
              f'v_pk_add_f32 v[{t}:{t+1}], v[{t}:{t+1}], v[{S+10}:{S+11}]', f'v_add_f32 v{t}, v{t}, v{t+1}', f'v_fmac_f32 v{t}, v{m}, v12']
        L += cr('v_add_f32', t, t + 1) + [f'v_rcp_f32 v{t}, v{t}', f'v_mov_b32 v{t+1}, v{t}']
        for r in range(0, 12, 2): L.append(f'v_pk_mul_f32 v[{S+r}:{S+r+1}], v[{S+r}:{S+r+1}], v[{t}:{t+1}]')
        for r in range(4): L.append(f'v_cvt_pk_bf16_f32 v{S+4+r}, v{S+4+2*r}, v{S+5+2*r}')
        pm = SC + 24*(hh >> 1) + 2*(hh & 1)
        L += [f'v_cvt_pk_bf16_f32 v{S}, v{S}, v{S+1}', f'v_cvt_pk_bf16_f32 v{S+1}, v{S+2}, v{S+3}']
        seqs.append(L)
    for i in range(len(seqs[0])):
        for L in seqs: a(L[i])
    for hp in range(2):
        S1 = SC + 12*(2*hp + 1); pm = SC + 24*hp
        a(f'v_mov_b32 v{pm+2}, v{S1}\nv_mov_b32 v{pm+3}, v{S1+1}')
    for hl in range(4):
        for t in range(7):
            o = OAC + 4*t; r = UU + 16*t + 4*hl; p = SC + 12*hl + 4
            c = f'v[{o}:{o+3}]' if hl else '0'
            a(f'v_mfma_f32_16x16x32_bf16 v[{o}:{o+3}], v[{r}:{r+3}], v[{p}:{p+3}], {c}')
    a(f'''
    s_lshl_b32 s14, s12, 8
    s_lshl_b32 s15, s10, 6
    s_add_u32 s14, s14, s15
    s_add_u32 s14, s14, {off['FL'] + 12288}
    v_min_u32 v10, 13, v4
    v_lshl_add_u32 v10, v10, 2, s14
    s_mov_b32 s14, 8192
    {P4}:
    global_load_dword v15, v10, s[8:9] sc0 sc1
    s_waitcnt vmcnt(0)
    v_cmp_eq_u32 vcc, 0, v15
    s_cbranch_vccz {D4}
    s_sleep 2
    s_sub_u32 s14, s14, 1
    s_cbranch_scc0 {P4}
    {D4}:
    ''')
    xstamp(a, 4)
    a('s_waitcnt vmcnt(0)')
    for t in range(7):
        a(f'v_add_u32 v8, s{60+t}, v7')
        for p in range(2): a(f'global_load_dwordx4 {zreg(t, p)}, v8, s[8:9] offset:{2048*p}')
    a(f's_mul_i32 s14, s10, 7168\nv_add_u32 v8, s14, v3\ns_lshl_b32 s14, s10, 10\nv_add_u32 v9, s14, v3')
    for t in range(7):
        a(f's_waitcnt vmcnt({12-2*t})')
        for p in range(2):
            o = OAC + 4*t; pm = SC + 24*p
            a(f'v_mfma_f32_16x16x32_bf16 v[{o}:{o+3}], {zreg(t, p)}, v[{pm}:{pm+3}], v[{o}:{o+3}]')
    for t in range(7): a(f'ds_write_b128 v8, v[{OAC+4*t}:{OAC+4*t+3}] offset:{1024*t}')
    a(f'''
    s_mul_i32 s14, s41, 14336
    s_mul_i32 s15, s42, 224
    s_add_u32 s14, s14, s15
    s_lshl_b32 s15, s10, 5
    s_add_u32 s14, s14, s15
    v_mul_u32_u24 v10, 896, v4
    v_lshl_add_u32 v10, v5, 3, v10
    v_add_u32 v10, s14, v10
    v_sub_f32 v15, 1.0, v14
    s_waitcnt vmcnt(0) lgkmcnt(0)
    s_barrier
    ''')
    for k in range(2):
        if k == 1: a(f's_cmp_eq_u32 s10, 3\ns_cbranch_scc1 {W3}')
        for wv in range(4): a(f'ds_read_b128 v[{16+4*wv}:{19+4*wv}], v9 offset:{7168*wv+4096*k}')
        for r in range(4): a(f'v_mul_f32 v{OA+4*k+r}, v{OA+4*k+r}, v14')
        a('''s_waitcnt lgkmcnt(0)
        v_pk_add_f32 v[16:17], v[16:17], v[20:21]
        v_pk_add_f32 v[18:19], v[18:19], v[22:23]
        v_pk_add_f32 v[24:25], v[24:25], v[28:29]
        v_pk_add_f32 v[26:27], v[26:27], v[30:31]
        v_pk_add_f32 v[16:17], v[16:17], v[24:25]
        v_pk_add_f32 v[18:19], v[18:19], v[26:27]''')
        for r in range(4): a(f'v_fmac_f32 v{OA+4*k+r}, v{16+r}, v15')
        a(f'v_cvt_pk_bf16_f32 v{32+2*k}, v{OA+4*k}, v{OA+4*k+1}\nv_cvt_pk_bf16_f32 v{33+2*k}, v{OA+4*k+2}, v{OA+4*k+3}')
        a(f'global_store_dwordx2 v10, v[{32+2*k}:{33+2*k}], s[90:91] offset:{128*k}')
    a(f'{W3}:')
    xstamp(a, 5)
    a(f's_waitcnt vmcnt(0)\ns_barrier\ns_branch {END}')
```

```python
import sys
from asmlib import *
import chain, prep, gemm
def build_file(path, which=('prep', 'gemm', 'chain', 'atta', 'xrow')):
    a = Asm()
    hdr = []; kd = []
    body = Asm()
    if 'prep' in which:
        hdr.append(f'; @launch kernel=prep_kernel grid=({prep.K1_GRID},1,1) block=(256,1,1) lds={prep.LDS_PREP}')
        prep.gen_prep(body, 'prep_kernel'); kd.append(kdesc('prep_kernel', 256, 102, 256))
    if 'gemm' in which:
        hdr.append(f'; @launch kernel=gemm_kernel grid=(256,1,1) block=(256,1,1) lds={gemm.LDS_GEMM}')
        gemm.gen_gemm(body, 'gemm_kernel'); kd.append(kdesc('gemm_kernel'))
    if 'chain' in which:
        hdr.append(f'; @launch kernel=chain_kernel grid=(256,1,1) block=(256,1,1) lds={chain.LDS_CHAIN}')
        chain.gen_chain(body, 'chain_kernel'); kd.append(kdesc('chain_kernel'))
    if 'atta' in which:
        import atta
        hdr.append(f'; @launch kernel=atta_kernel grid=({atta.GRID},1,1) block=(256,1,1) lds={atta.LDS}')
        atta.gen(body, 'atta_kernel'); kd.append(kdesc('atta_kernel'))
    if 'xrow' in which:
        import xrow
        hdr.append(f'; @launch kernel=xrow_kernel grid=({xrow.GRID},1,1) block=(256,1,1) lds={xrow.LDS}')
        xrow.gen(body, 'xrow_kernel'); kd.append(kdesc('xrow_kernel'))
    if 'main' in which:
        import main
        hdr.append(f'; @launch kernel=main_kernel grid=(256,1,1) block=(256,1,1) lds={chain.LDS_CHAIN}')
        main.gen(body, 'main_kernel', prof=('prof' in which)); kd.append(kdesc('main_kernel'))
    txt = '\n'.join(hdr) + '\n.amdgcn_target "amdgcn-amd-amdhsa--gfx950"\n.text\n' + body.text() + '.section .rodata,"a"\n' + ''.join(kd)
    open(path, 'w').write(txt)
if __name__ == '__main__':
    build_file(sys.argv[1], sys.argv[2].split(',') if len(sys.argv) > 2 else ('prep', 'gemm', 'chain', 'atta', 'xrow'))
```

```python
from asmlib import *
from layout import off
from chain import sadd, sbase
import struct, os
def f2u(f): return struct.unpack('<I', struct.pack('<f', f))[0]
LOG2E = 1.4426950408889634
N_FOLD, N_XP, N_WQ, N_WOA, N_FILL, N_GATE, N_XK = 256, 32, 24, 7, 24, 32, 64
K1_GRID = N_FOLD + N_XP + N_WQ + N_WOA + N_FILL + N_GATE + N_XK + 1

LDS_PREP = 57344
def fold_task(a, END):
    M1 = a.lab('FM1')
    AF, BF, ACC, EP = 64, 16, 192, 224
    a(f'''
    s_load_dwordx2 s[12:13], s[0:1], 40     ; Wq
    s_load_dwordx2 s[14:15], s[0:1], 48     ; Wk
    s_load_dwordx2 s[16:17], s[0:1], 56     ; Wv
    s_load_dwordx2 s[18:19], s[0:1], 64     ; Wo
    s_bfe_u32 s20, s2, 0x10003              ; kh
    s_bfe_u32 s21, s2, 0x20004              ; nq
    s_bfe_u32 s22, s2, 0x10006
    s_lshl_b32 s22, s22, 3
    s_and_b32 s23, s2, 7
    s_add_u32 s22, s22, s23                 ; h
    s_mul_i32 s20, s20, 7
    s_lshl_b32 s23, s10, 1
    s_add_u32 s23, s23, s20                 ; it_a
    s_add_u32 s24, s23, 1
    s_add_u32 s20, s20, 6
    s_min_u32 s24, s24, s20                 ; it_b
    v_and_b32 v3, 15, v2                    ; n_l / rho
    v_lshrrev_b32 v4, 4, v2                 ; g
    v_lshrrev_b32 v5, 3, v3
    v_lshlrev_b32 v5, 4, v5
    v_bfe_u32 v6, v3, 1, 1
    v_lshl_add_u32 v5, v6, 3, v5
    v_bfe_u32 v6, v3, 2, 1
    v_lshl_add_u32 v5, v6, 2, v5
    v_and_b32 v6, 1, v3
    v_add_u32 v5, v5, v6                    ; kappa(rho)
    s_lshl_b32 s25, s22, 9
    v_lshlrev_b32 v5, 13, v5
    v_lshl_add_u32 v5, v4, 4, v5
    v_add_u32 v5, s25, v5
    s_lshl_b32 s26, s23, 18
    v_add_u32 v6, s26, v5
    v_add_u32 v7, 16384, v6
    s_lshl_b32 s26, s24, 18
    v_add_u32 v8, s26, v5
    v_add_u32 v9, 16384, v8
    v_lshlrev_b32 v10, 4, v2
    s_lshl_b32 s23, s23, 10
    s_lshl_b32 s24, s24, 10
    s_mul_i32 s27, s10, 14336
    s_waitcnt lgkmcnt(0)
    s_cmp_ge_u32 s2, 128
    s_cbranch_scc1 {M1}
    ''')
    def a_loads(sb):
        for q in range(4):
            for ks in range(8):
                r = AF + 32*q + 4*ks
                a(f'global_load_dwordx4 v[{r}:{r+3}], v{6+q}, s[{sb}:{sb+1}] offset:{64*ks}')
    def body(mat):
        def rd(f):
            nt, ks = divmod(f, 8); b = BF + 4*(f & 7)
            if mat == 0: a(f'ds_read_b128 v[{b}:{b+3}], v10 offset:{1024*f}')
            else: a(f'ds_read_b64_tr_b16 v[{b}:{b+1}], v11 offset:{7168*ks+32*nt}\nds_read_b64_tr_b16 v[{b+2}:{b+3}], v11 offset:{7168*ks+32*nt+896}')
        per = 1 if mat == 0 else 2
        a('s_waitcnt vmcnt(32)\ns_barrier')
        for f in range(6): rd(f)
        def epi(nt):
            L = []
            for k in range(2):
                ac = ACC + 16*(nt & 1) + 8*k; e = EP + 12*k
                for r in range(0, 8, 2): L.append(f'v_pk_mul_f32 v[{e+r}:{e+r+1}], v[{ac+r}:{ac+r+1}], s[28:29]')
                for r in range(4): L.append(f'v_cvt_pk_bf16_f32 v{e+8+r}, v{e+2*r}, v{e+2*r+1}')
                L.append(f'global_store_dwordx4 v{12+k}, v[{e+8}:{e+11}], s[8:9]')
                if mat == 0: L.append(f'v_add_u32 v{12+k}, 14336, v{12+k}')
                else: L.append(f'v_add_u32 v{12+k}, s30, v{12+k}')
            if mat == 1: L.append('s_sub_u32 s30, 458752, s30')
            return L
        pend = []
        for f in range(56):
            nt, ks = divmod(f, 8); b = BF + 4*(f & 7)
            a(f's_waitcnt lgkmcnt({per*min(5, 55 - f)})' + (f' vmcnt({24 - 0})' if False else ''))
            if f == 0: a('s_waitcnt vmcnt(0)')
            for q in range(4):
                ac = ACC + 16*(nt & 1) + 4*q; r = AF + 32*q + 4*ks
                c = '0' if ks == 0 else f'v[{ac}:{ac+3}]'
                a(f'v_mfma_f32_16x16x32_bf16 v[{ac}:{ac+3}], v[{r}:{r+3}], v[{b}:{b+3}], {c}')
                if q == 0 and f + 6 < 56: rd(f + 6)
                elif pend: a(pend.pop(0))
            if ks == 0 and nt >= 1: pend = epi(nt - 1)
        assert not pend
        for p in epi(6): a(p)
        a(f's_branch {END}')
    a(f'''
    s_mul_i32 s26, s21, {112*8192}
    s_add_u32 s26, s26, s25
    v_lshlrev_b32 v11, 13, v3
    v_lshl_add_u32 v11, v4, 4, v11
    v_add_u32 v11, s26, v11
    s_mul_i32 s30, s10, 14
    ''')
    for i in range(14):
        a(f'''s_add_u32 s26, s30, {i}
        s_lshr_b32 s31, s26, 3
        s_and_b32 s26, s26, 7
        s_lshl_b32 s31, s31, 17
        s_lshl_b32 s26, s26, 6
        s_add_u32 s26, s26, s31
        v_add_u32 v14, s26, v11
        s_add_u32 m0, s27, {1024*i}
        global_load_lds_dwordx4 v14, s[14:15]''')
    a_loads(12)
    a(f'''
    s_mul_i32 s26, s22, 401408
    s_mul_i32 s31, s21, {7*14336}
    s_add_u32 s26, s26, s31
    s_add_u32 s26, s26, {off['WA']}
    v_add_u32 v13, s26, v10
    v_add_u32 v12, s23, v13
    v_add_u32 v13, s24, v13
    s_mov_b32 s28, 0x{f2u(LOG2E/16):08x}
    s_mov_b32 s29, s28
    ''')
    body(0)
    a(f'''
    {M1}:
    s_mul_i32 s26, s22, 229376
    s_mul_i32 s31, s21, 224
    s_add_u32 s26, s26, s31
    s_mul_i32 s31, s10, {64*896}
    s_add_u32 s26, s26, s31
    ''')
    for i in range(7):
        a(f'''v_add_u32 v14, {64*i}, v2
        v_mul_u32_u24 v15, 4682, v14
        v_lshrrev_b32 v15, 16, v15
        v_mul_u32_u24 v16, {896-224}, v15
        v_lshl_add_u32 v16, v14, 4, v16
        v_add_u32 v16, s26, v16
        v_add_u32 v17, {32*896}, v16
        s_add_u32 m0, s27, {1024*i}
        global_load_lds_dwordx4 v16, s[18:19]
        s_add_u32 m0, s27, {1024*i+7168}
        global_load_lds_dwordx4 v17, s[18:19]''')
    a_loads(16)
    a(f'''
    v_lshrrev_b32 v11, 2, v3
    v_lshl_add_u32 v11, v4, 3, v11
    v_mul_u32_u24 v11, 224, v11
    v_and_b32 v14, 3, v3
    v_lshl_add_u32 v11, v14, 3, v11
    s_mul_i32 s31, s21, 7                   ; nt0
    s_lshr_b32 s26, s31, 1
    s_mul_i32 s26, s26, 458752
    s_and_b32 s31, s31, 1
    s_mul_i32 s30, s31, 14336
    s_add_u32 s26, s26, s30
    s_mul_i32 s30, s22, 28672
    s_add_u32 s26, s26, s30
    s_add_u32 s26, s26, {off['WB']}
    v_add_u32 v13, s26, v10
    v_add_u32 v12, s23, v13
    v_add_u32 v13, s24, v13
    s_cmp_eq_u32 s31, 0
    s_mov_b32 s30, 14336
    s_cselect_b32 s30, s30, {458752-14336}
    s_mov_b32 s28, 1.0
    s_mov_b32 s29, 1.0
    ''')
    body(1)

def xp_task(a, END):
    a(f'''
    s_lshl_b32 s12, s2, 2
    s_add_u32 s12, s12, s10
    s_mul_i32 s13, s12, 14336
    v_and_b32 v3, 15, v2
    v_lshrrev_b32 v4, 4, v2
    v_mul_u32_u24 v5, 896, v3
    v_lshrrev_b32 v6, 1, v4
    v_lshl_add_u32 v5, v6, 5, v5
    v_and_b32 v6, 1, v4
    v_lshl_add_u32 v5, v6, 3, v5
    v_add_u32 v5, s13, v5
    v_lshlrev_b32 v6, 4, v2
    v_add_u32 v6, s13, v6
    v_add_u32 v6, {off['XP']}, v6
    ''')
    for f in range(14):
        r = 16 + 4*f
        a(f'global_load_dwordx2 v[{r}:{r+1}], v5, s[4:5] offset:{64*f}\nglobal_load_dwordx2 v[{r+2}:{r+3}], v5, s[4:5] offset:{64*f+16}')
    for f in range(14):
        r = 16 + 4*f
        a(f's_waitcnt vmcnt({26-2*f})\nv_swap_b32 v{r+1}, v{r+2}')
        a(f'global_store_dwordx4 v6, v[{r}:{r+3}], s[8:9] offset:{(f&3)*1024}')
        if f % 4 == 3: a('v_add_u32 v6, 4096, v6')
    a(f's_branch {END}')

def xk_task(a, END):
    a(f'''
    s_mul_i32 s12, s2, 28672
    s_mul_i32 s13, s10, 224
    s_add_u32 s13, s13, s12
    v_and_b32 v3, 15, v2
    v_lshrrev_b32 v4, 4, v2
    v_mul_u32_u24 v5, 896, v3
    v_add_u32 v5, s13, v5
    v_lshl_add_u32 v6, v4, 4, v5
    v_lshl_add_u32 v7, v4, 3, v5
    v_add_u32 v8, 14336, v6
    v_add_u32 v9, 14336, v7
    s_mul_i32 s13, s10, 7168
    s_add_u32 s13, s13, s12
    s_add_u32 s13, s13, {off['XK'] + 4096}
    v_lshlrev_b32 v10, 4, v2
    v_add_u32 v10, s13, v10
    ''')
    for jt in range(2):
        for q in range(3): a(f'global_load_dwordx4 v[{16+12*jt+4*q}:{19+12*jt+4*q}], v{6+2*jt}, s[4:5] offset:{64*q}')
        a(f'global_load_dwordx2 v[{40+2*jt}:{41+2*jt}], v{7+2*jt}, s[4:5] offset:192')
    a('s_waitcnt vmcnt(0)')
    for f in range(7): a(f'global_store_dwordx4 v10, v[{16+4*f}:{19+4*f}], s[8:9] offset:{1024*f-4096}')
    a(f's_branch {END}')

def wq_task(a, END):
    a(f'''
    s_load_dwordx2 s[14:15], s[0:1], 8
    s_lshl_b32 s12, s2, 2
    s_add_u32 s12, s12, s10
    s_lshr_b32 s13, s12, 5
    s_mul_i32 s13, s13, 448
    s_bfe_u32 s16, s12, 0x40001
    s_mul_i32 s16, s16, 28
    s_add_u32 s13, s13, s16
    s_and_b32 s16, s12, 1
    s_lshl_b32 s16, s16, 4
    s_add_u32 s13, s13, s16           ; col0
    v_and_b32 v3, 15, v2
    v_lshrrev_b32 v4, 4, v2
    v_lshrrev_b32 v6, 1, v4
    v_lshlrev_b32 v5, 4, v6
    v_and_b32 v6, 1, v4
    v_lshl_add_u32 v5, v6, 2, v5
    v_mul_u32_u24 v5, 2688, v5
    v_add_u32 v6, s13, v3
    v_lshl_add_u32 v5, v6, 1, v5
    v_add_u32 v7, {8*2688}, v5
    s_mul_i32 s13, s12, 14336
    v_lshlrev_b32 v6, 4, v2
    v_add_u32 v6, s13, v6
    v_add_u32 v6, {off['WQ']}, v6
    v_add_u32 v8, s16, v3
    ''')
    for r in range(80, 192): a(f'v_mov_b32 v{r}, 0')
    a('s_waitcnt lgkmcnt(0)\nv_cmp_gt_u32 vcc, 28, v8\ns_mov_b64 exec, vcc')
    a('v_add_u32 v5, 2688, v5\nv_add_u32 v7, 2688, v7')
    for f in range(14):
        r = 16 + 4*f
        for e in range(8):
            ko = [0, 1, 8, 9, 2, 3, 10, 11][e]
            v = 'v5' if ko < 8 else 'v7'; k4 = ko & 3
            if k4 < 3: a(f'global_load_ushort v{80+8*f+e}, {v}, s[14:15] offset:{(k4-1)*2688}')
        a('v_add_u32 v5, 5376, v5\nv_add_u32 v7, 5376, v7')
        a(f'global_load_ushort v{80+8*f+5}, v5, s[14:15]\nglobal_load_ushort v{80+8*f+7}, v7, s[14:15]')
        a(f'v_add_u32 v5, {32*2688-5376}, v5\nv_add_u32 v7, {32*2688-5376}, v7')
        if f % 4 == 3: a('s_waitcnt vmcnt(16)')
    a('s_mov_b64 exec, -1\ns_waitcnt vmcnt(0)')
    for r in range(56): a(f'v_lshl_or_b32 v{16+r}, v{81+2*r}, 16, v{80+2*r}')
    for f in range(14):
        r = 16 + 4*f
        a(f'global_store_dwordx4 v6, v[{r}:{r+3}], s[8:9] offset:{(f&3)*1024}')
        if f % 4 == 3: a('v_add_u32 v6, 4096, v6')
    a(f's_branch {END}')

def woa_task(a, END):
    a(f'''
    s_load_dwordx2 s[14:15], s[0:1], 16
    s_lshl_b32 s12, s2, 2
    s_add_u32 s12, s12, s10
    v_and_b32 v3, 15, v2
    v_lshrrev_b32 v4, 4, v2
    v_mul_u32_u24 v5, 3584, v4
    s_lshl_b32 s13, s12, 5
    v_lshl_add_u32 v5, v3, 1, v5
    v_add_u32 v5, s13, v5
    v_add_u32 v7, {16*896}, v5
    s_lshl_b32 s13, s12, 14
    v_lshlrev_b32 v6, 4, v2
    v_add_u32 v6, s13, v6
    v_add_u32 v6, {off['WOA']}, v6
    ''')
    for r in range(80, 208): a(f'v_mov_b32 v{r}, 0')
    a('s_waitcnt lgkmcnt(0)\ns_mov_b32 s16, -1\ns_mov_b32 s17, 0xffff')
    for h in range(16):
        r = 16 + 4*h
        for e in range(4): a(f'global_load_ushort v{80+8*h+e}, v5, s[14:15] offset:{e*896}')
        a('s_mov_b64 exec, s[16:17]')
        for e in range(4): a(f'global_load_ushort v{84+8*h+e}, v7, s[14:15] offset:{e*896}')
        a('s_mov_b64 exec, -1')
        if h < 15: a(f'v_add_u32 v5, {28*896}, v5\nv_add_u32 v7, {28*896}, v7')
        if h % 4 == 3: a('s_waitcnt vmcnt(16)')
    a('s_waitcnt vmcnt(0)')
    for r in range(64): a(f'v_lshl_or_b32 v{16+r}, v{81+2*r}, 16, v{80+2*r}')
    for h in range(16):
        r = 16 + 4*h
        a(f'global_store_dwordx4 v6, v[{r}:{r+3}], s[8:9] offset:{(h&3)*1024}')
        if h % 4 == 3: a('v_add_u32 v6, 4096, v6')
    a(f's_branch {END}')

def fill_task(a, END):
    a(f'''
    s_lshl_b32 s12, s2, 2
    s_add_u32 s12, s12, s10
    s_lshl_b32 s13, s12, 14
    s_mov_b32 s14, {off['MEM'] + 7168}
    s_cmp_ge_u32 s12, 28
    s_cselect_b32 s14, {off['PB'] - 28*16384}, s14
    s_cmp_ge_u32 s12, 68
    s_cselect_b32 s14, {off['MEM2'] + 7168 - 68*16384}, s14
    s_add_u32 s13, s13, s14
    v_lshlrev_b32 v6, 4, v2
    v_add_u32 v6, s13, v6
    v_mov_b32 v8, -1
    v_mov_b32 v9, -1
    v_mov_b32 v10, -1
    v_mov_b32 v11, -1
    ''')
    for f in range(16):
        a(f'global_store_dwordx4 v6, v[8:11], s[8:9] offset:{(f&3)*1024}')
        if f % 4 == 3: a('v_add_u32 v6, 4096, v6')
    a(f's_branch {END}')

def gate_task(a, END):
    a(f'''
    s_load_dwordx2 s[14:15], s[0:1], 80
    s_lshl_b32 s12, s2, 2
    s_add_u32 s12, s12, s10
    s_mul_i32 s13, s12, 14336
    v_and_b32 v3, 15, v2
    v_lshrrev_b32 v4, 4, v2
    v_mul_u32_u24 v5, 896, v3
    v_mul_u32_u24 v6, 224, v4
    v_add_u32 v5, v5, v6
    v_add_u32 v5, s13, v5
    v_mov_b32 v8, 0
    v_mov_b32 v9, 0
    s_waitcnt lgkmcnt(0)
    ''')
    for f in range(14):
        a(f'global_load_dwordx4 v[{16+4*f}:{19+4*f}], v5, s[4:5] offset:{16*f}\nglobal_load_dwordx4 v[{80+4*f}:{83+4*f}], v6, s[14:15] offset:{16*f}')
    a('s_waitcnt vmcnt(0)')
    for r in range(56):
        a(f'''v_lshlrev_b32 v10, 16, v{16+r}
        v_lshlrev_b32 v11, 16, v{80+r}
        v_and_b32 v12, 0xffff0000, v{16+r}
        v_and_b32 v13, 0xffff0000, v{80+r}
        v_fmac_f32 v8, v10, v11
        v_fmac_f32 v9, v12, v13''')
    a(f'''
    v_add_f32 v8, v8, v9
    v_mov_b32 v9, v8
    v_permlane16_swap_b32 v8, v9
    v_add_f32 v8, v8, v9
    v_mov_b32 v9, v8
    v_permlane32_swap_b32 v8, v9
    v_add_f32 v8, v8, v9
    v_mul_f32 v8, 0x{f2u(-LOG2E):08x}, v8
    v_exp_f32 v8, v8
    v_add_f32 v8, 1.0, v8
    v_rcp_f32 v8, v8
    s_lshl_b32 s13, s12, 6
    s_add_u32 s13, s13, {off['G']}
    v_lshlrev_b32 v5, 2, v3
    v_add_u32 v5, s13, v5
    s_mov_b64 exec, 0xffff
    global_store_dword v5, v8, s[8:9]
    s_branch {END}
    ''')

def mem0_task(a, END):
    a(f'''
    s_load_dwordx2 s[14:15], s[0:1], 32
    v_and_b32 v3, 7, v0
    v_lshrrev_b32 v4, 3, v0
    v_mul_u32_u24 v5, 896, v3
    v_lshl_add_u32 v5, v4, 4, v5
    v_lshlrev_b32 v6, 4, v0
    v_add_u32 v6, {off['MEM']}, v6
    s_waitcnt lgkmcnt(0)
    global_load_dwordx4 v[8:11], v5, s[14:15]
    v_cmp_gt_u32 vcc, 192, v0
    s_waitcnt vmcnt(0)
    ''')
    for r in range(8, 12): a(f'v_min_u32 v{r}, -2, v{r}')
    a(f'''global_store_dwordx4 v6, v[8:11], s[8:9]
    v_add_u32 v7, {off['MEM2'] - off['MEM']}, v6
    global_store_dwordx4 v7, v[8:11], s[8:9]
    v_add_u32 v20, {off['FL'] - off['MEM']}, v6
    v_mov_b32 v16, 0
    v_mov_b32 v17, 0
    v_mov_b32 v18, 0
    v_mov_b32 v19, 0
    global_store_dwordx4 v20, v[16:19], s[8:9]
    v_add_u32 v20, 4096, v20
    global_store_dwordx4 v20, v[16:19], s[8:9]
    v_add_u32 v20, 4096, v20
    global_store_dwordx4 v20, v[16:19], s[8:9]
    v_add_u32 v20, 4096, v20
    global_store_dwordx4 v20, v[16:19], s[8:9]
    v_add_u32 v20, 4096, v20
    global_store_dwordx4 v20, v[16:19], s[8:9]
    v_add_u32 v20, 4096, v20
    global_store_dwordx4 v20, v[16:19], s[8:9]
    v_add_u32 v20, 4096, v20
    global_store_dwordx4 v20, v[16:19], s[8:9]
    v_add_u32 v7, 4096, v7
    s_mov_b64 exec, vcc
    global_load_dwordx4 v[12:15], v5, s[14:15] offset:512
    v_add_u32 v6, 4096, v6
    s_waitcnt vmcnt(0)''')
    for r in range(12, 16): a(f'v_min_u32 v{r}, -2, v{r}')
    a(f'global_store_dwordx4 v6, v[12:15], s[8:9]\nglobal_store_dwordx4 v7, v[12:15], s[8:9]\ns_branch {END}')

def gen_prep(a, name):
    kernel_begin(a, name)
    END = a.lab('K1END')
    a('''
    s_load_dwordx2 s[4:5], s[0:1], 0
    s_load_dwordx2 s[8:9], s[0:1], 104
    v_lshrrev_b32 v1, 6, v0
    v_and_b32 v2, 63, v0
    v_readfirstlane_b32 s10, v1
    s_waitcnt lgkmcnt(0)
    ''')
    for n, fn in ((N_FOLD, fold_task), (N_XP, xp_task), (N_WQ, wq_task), (N_WOA, woa_task), (N_FILL, fill_task), (N_GATE, gate_task), (N_XK, xk_task), (1, mem0_task)):
        NX = a.lab('K1N')
        a(f's_cmp_ge_u32 s2, {n}\ns_cbranch_scc1 {NX}')
        if fn.__name__ in os.environ.get('SKIP', '').split(','): a(f's_branch {END}')
        else: fn(a, END)
        a(f'{NX}:\ns_sub_u32 s2, s2, {n}')
    a(f'{END}:\ns_endpgm')
```
